```python
import torch

def _softmax(x, axis=-1):
    return torch.softmax(x, dim=axis)
def _gelu(x):
    return torch.nn.functional.gelu(x, approximate="tanh")
def _silu(x):
    return torch.nn.functional.silu(x)
def _sigmoid(x):
    return torch.sigmoid(x)
def _layernorm(x, axis=-1, eps=1e-5):
    m = x.mean(dim=axis, keepdim=True)
    v = x.var(dim=axis, keepdim=True, unbiased=False)
    return (x - m) / torch.sqrt(v + eps)
def _scatter_add(tgt, idx, src, axis=0):
    return tgt.clone().index_add_(axis, idx, src)
def _segment_sum(src, seg, n):
    out = torch.zeros((n,) + src.shape[1:], dtype=src.dtype)
    return out.index_add_(0, seg, src)
def _pad(x, pw):
    flat = tuple(v for pair in reversed(pw) for v in pair)
    return torch.nn.functional.pad(x, flat)

kernel_name = 'recurrent_scan__spectral_gfnet__glu_gated_geglu__prompt'

def setup_inputs():

    _w = (lambda a: (lambda t: t.to(torch.bfloat16) if t.is_floating_point() else t)(torch.as_tensor(a)))
    def _A_setup():
        B, S, D = 1, 2048, 512
        Df = D // 2 + 1
        return {
            "x": _w((lambda *s: torch.randn(*s, dtype=torch.bfloat16) * 0.1)(B, S, D)),
            "w_r": _w((lambda *s: torch.randn(*s, dtype=torch.bfloat16) * 3.2)(S, Df) * 0.02),
            "w_i": _w((lambda *s: torch.randn(*s, dtype=torch.bfloat16) * 3.2)(S, Df) * 0.02),
        }
    _A_in = _A_setup()

    def _B_setup():
        B, S, Dm, Df = 1, 2048, 512, 1376
        return {
            "x": _w((lambda *s: torch.randn(*s, dtype=torch.bfloat16) * 0.1)(B, S, Dm)),
            "w_gate": _w((lambda *s: torch.randn(*s, dtype=torch.bfloat16) * 0.8)(Dm, Df) * (Dm ** -0.5)),
            "w_up": _w((lambda *s: torch.randn(*s, dtype=torch.bfloat16) * 0.8)(Dm, Df) * (Dm ** -0.5)),
            "w_down": _w((lambda *s: torch.randn(*s, dtype=torch.bfloat16) * 0.8)(Df, Dm) * (Df ** -0.5)),
        }
    _B_in = _B_setup()

    return {
        "A_x": _A_in["x"],
        "A_w_r": _A_in["w_r"],
        "A_w_i": _A_in["w_i"],
        "B_x": _B_in["x"],
        "B_w_gate": _B_in["w_gate"],
        "B_w_up": _B_in["w_up"],
        "B_w_down": _B_in["w_down"],
    }

def reference(A_x, A_w_r, A_w_i, B_x, B_w_gate, B_w_up, B_w_down):
    def _A_ref(x, w_r, w_i):
        B, S, D = x.shape
        X = (lambda x, axes=(-2,-1): torch.fft.rfft2(x.float(), dim=axes))(x, axes=(-2, -1))
        W = w_r + 1j * w_i
        X = X * W
        y = (lambda x, s, axes=(-2,-1): torch.fft.irfft2(x, s=s, dim=axes).to(torch.bfloat16))(X, (S, D), axes=(-2, -1))
        return y

    def _B_ref(x, w_gate, w_up, w_down):
        g = torch.einsum("bsd,df->bsf", x, w_gate)
        u = torch.einsum("bsd,df->bsf", x, w_up)
        h = _gelu(g) * u
        return torch.einsum("bsf,fd->bsd", h, w_down)

    x = A_x
    xn = _layernorm(x, axis=-1)
    s = _A_ref(xn, A_w_r, A_w_i)
    g = _silu(_B_ref(xn, B_w_gate, B_w_up, B_w_down))
    return x + s * g
```

```python
import re

TRANS = ("v_exp_f32","v_log_f32","v_rcp_f32","v_rsq_f32","v_sqrt_f32","v_sin_f32","v_cos_f32","v_rcp_iflag_f32")

def parse_regs(op):
    op = op.strip()
    out = set()
    m = re.match(r'^-?\|?(?:abs\()?([vsa])\[(\d+):(\d+)\]\)?\|?$', op)
    if m:
        for i in range(int(m.group(2)), int(m.group(3)) + 1):
            out.add((m.group(1), i))
        return out
    m = re.match(r'^-?\|?(?:abs\()?([vsa])(\d+)\)?\|?$', op)
    if m:
        out.add((m.group(1), int(m.group(2))))
        return out
    if op in ("vcc", "vcc_lo", "vcc_hi"):
        out.add(("vcc", 0))
    elif op in ("exec", "exec_lo", "exec_hi"):
        out.add(("exec", 0))
    elif op == "m0":
        out.add(("m0", 0))
    return out

class Ins:
    __slots__ = ("text", "mn", "dst", "src", "kind", "passes", "states", "srcC", "srcAB", "dpp")
    def __init__(self, text):
        self.text = text
        t = text.split(";")[0].strip()
        parts = t.split(None, 1)
        self.mn = parts[0]
        rest = parts[1] if len(parts) > 1 else ""
        ops = []
        cur = ""; depth = 0
        for ch in rest:
            if ch == "[": depth += 1
            if ch == "]": depth -= 1
            if ch == "," and depth == 0:
                ops.append(cur.strip()); cur = ""
            else:
                cur += ch
        if cur.strip(): ops.append(cur.strip())
        mods = ""
        if ops:
            last = ops[-1]
            mm = re.match(r'^(\S+)\s+(.*)$', last)
            if mm:
                ops[-1] = mm.group(1); mods = mm.group(2)
        mn = self.mn
        self.dst = set(); self.src = set(); self.kind = "other"; self.passes = 0
        self.states = 1; self.srcC = set(); self.srcAB = set()
        self.dpp = ("quad_perm" in mods) or ("row_" in mods) or ("wave_" in mods)
        R = [parse_regs(o) for o in ops]
        if mn == "s_nop":
            self.states = int(ops[0], 0) + 1; self.kind = "nop"
        elif mn.startswith("v_mfma"):
            self.kind = "mfma"
            self.passes = 8 if "32x32x16" in mn or "32x32x8" in mn else (4 if ("16x16x32" in mn or "16x16x16" in mn) else 16)
            self.dst = R[0]; self.srcAB = R[1] | R[2]; self.srcC = R[3]; self.src = self.srcAB | self.srcC
        elif mn.startswith("v_cmp"):
            self.kind = "valu"; self.dst = R[0]
            for r in R[1:]: self.src |= r
        elif mn in ("v_readfirstlane_b32", "v_readlane_b32"):
            self.kind = "valu"; self.dst = R[0]
            for r in R[1:]: self.src |= r
        elif mn.startswith("v_permlane") and "swap" in mn:
            self.kind = "valu"; self.dst = R[0] | R[1]; self.src = R[0] | R[1]
        elif mn in ("v_add_co_u32", "v_addc_co_u32", "v_sub_co_u32", "v_subb_co_u32"):
            self.kind = "valu"; self.dst = R[0] | R[1]
            for r in R[2:]: self.src |= r
        elif mn.startswith("v_"):
            self.kind = "valu"; self.dst = R[0]
            for r in R[1:]: self.src |= r
            if mn.startswith("v_fmac") or mn.startswith("v_dot2c") or mn.startswith("v_pk_fmac"): self.src |= R[0]
            if mn == "v_cndmask_b32" and len(ops) == 3: self.src.add(("vcc", 0))
        elif mn.startswith("ds_write") or mn.startswith("ds_add"):
            self.kind = "ds"
            for r in R: self.src |= r
        elif mn.startswith("ds_"):
            self.kind = "ds"; self.dst = R[0]
            for r in R[1:]: self.src |= r
        elif mn.startswith("buffer_store") or mn.startswith("global_store") or mn.startswith("buffer_atomic") or mn.startswith("global_atomic"):
            self.kind = "vmem_st"
            for r in R: self.src |= r
        elif mn.startswith("buffer_load") or mn.startswith("global_load"):
            if " lds" in (" " + mods) or "_lds_" in mn:
                self.kind = "vmem_lds"
                for r in R: self.src |= r
                self.src.add(("m0", 0))
            else:
                self.kind = "vmem_ld"; self.dst = R[0]
                for r in R[1:]: self.src |= r
        elif mn.startswith("s_"):
            self.kind = "salu"
            if mn.startswith("s_cmp") or mn in ("s_waitcnt", "s_barrier", "s_branch", "s_endpgm", "s_setprio", "s_sleep") or mn.startswith("s_cbranch"):
                for r in R: self.src |= r
            else:
                if R: self.dst = R[0]
                for r in R[1:]: self.src |= r

def need(p, c):
    n = 0
    pv = {r for r in p.dst if r[0] in "va"}
    ps = {r for r in p.dst if r[0] in ("s", "vcc")}
    cisvec = c.kind in ("valu", "mfma", "ds", "vmem_st", "vmem_ld", "vmem_lds")
    if p.kind == "valu":
        if c.kind == "mfma" and (pv & c.src): n = max(n, 2)
        if p.mn in TRANS and c.kind in ("valu","mfma") and c.mn not in TRANS and (pv & c.src): n = max(n, 1)
        if ps:
            if c.kind == "valu" and (ps & c.src):
                n = max(n, 4 if c.mn in ("v_readlane_b32", "v_writelane_b32") else 2)
            if c.kind in ("vmem_st", "vmem_ld", "vmem_lds") and (ps & c.src): n = max(n, 5)
        if c.mn in ("v_readlane_b32", "v_readfirstlane_b32") and (pv & c.src): n = max(n, 1)
        if c.kind == "valu" and c.dpp and (pv & c.src): n = max(n, 2)
        if c.mn.startswith("v_permlane") and (pv & c.src): n = max(n, 2)
        if p.mn.startswith("v_dot2"):
            if (pv & (c.src | c.dst)) and cisvec: n = max(n, 3)
    if p.kind == "mfma":
        tab = {2: (5, 4, 1), 4: (8, 6, 3), 8: (12, 10, 7), 16: (20, 18, 15)}[p.passes]
        if c.kind == "mfma":
            if p.dst & c.srcAB: n = max(n, tab[0])
            if p.dst & c.srcC:
                if not (p.dst == c.srcC and p.passes == c.passes): n = max(n, tab[1])
            elif p.dst & c.dst: n = max(n, tab[1])
        elif cisvec:
            if p.dst & (c.src | c.dst): n = max(n, tab[0])
            if c.kind == "valu" and (p.srcC & c.dst): n = max(n, tab[2])
    if p.kind == "vmem_st" and ("x4" in p.mn or "x3" in p.mn):
        if cisvec and (p.src & {r for r in c.dst if r[0] in "va"}): n = max(n, 2)
    if p.kind == "salu" and ("m0", 0) in p.dst and c.kind == "vmem_lds": n = max(n, 1)
    return n

class Asm:
    def __init__(self):
        self.lines = []
    def __call__(self, text):
        for t in text.strip().split("\n"):
            t = t.strip()
            if not t or t.startswith(";"): continue
            self.lines.append(("i", Ins(t)))
    def label(self, name):
        self.lines.append(("l", name))
    def raw(self, text):
        self.lines.append(("r", text))
    def comment(self, text):
        self.lines.append(("r", "; " + text))
    def render(self):
        out = []
        hist = []
        pos = 0
        def flush():
            nonlocal pos, hist
            mx = 0
            for (p, ppos) in hist:
                w = 0
                if p.kind == "mfma": w = {2:5,4:8,8:12,16:20}[p.passes]
                elif p.kind == "valu": w = 5 if any(r[0] in ("s","vcc") for r in p.dst) else 3
                elif p.kind == "vmem_st": w = 2
                elif p.kind == "salu" and ("m0",0) in p.dst: w = 1
                mx = max(mx, w - (pos - ppos - 1))
            while mx > 0:
                k = min(mx, 16)
                out.append(f"    s_nop {k-1}")
                pos += k; mx -= k
            hist = []
        for kind, x in self.lines:
            if kind == "r":
                out.append(x); continue
            if kind == "l":
                flush(); out.append(f"{x}:"); continue
            c = x
            req = 0
            for (p, ppos) in hist:
                n = need(p, c)
                if n:
                    gap = pos - ppos - 1
                    req = max(req, n - gap)
            while req > 0:
                k = min(req, 16)
                out.append(f"    s_nop {k-1}")
                pos += k; req -= k
            if c.mn.startswith("s_cbranch") or c.mn == "s_branch":
                flush()
            out.append("    " + c.text)
            hist.append((c, pos + c.states - 1))
            pos += c.states
            hist = [(p, pp) for (p, pp) in hist if pos - pp <= 24]
        return "\n".join(out) + "\n"

def v(i, n=1):
    return f"v{i}" if n == 1 else f"v[{i}:{i+n-1}]"
def s(i, n=1):
    return f"s{i}" if n == 1 else f"s[{i}:{i+n-1}]"
```

```python
import math, struct
from asmgen import *

KN = "recurrent_scan__spectral_gfnet__glu_gated_geglu__prompt"

CSTR = 16384 + 256
RS = 16384 + 256
WS_Y1T = 0x000000; SZ_Y1T = 256*RS
WS_Y2T = 0x500000; SZ_Y2T = 256*CSTR
WS_H   = 0xA00000; SZ_H = 86*64*1024
WS_WD  = 0x1000000; SZ_WD = 86*16*1024
WS_WT  = 0x1200000; SZ_WT = 257*2048*4
WS_G   = 0x1500000; SZ_G = 2048*512*2

def f2u(x): return struct.unpack("<I", struct.pack("<f", x))[0]
def fhex(x): return "0x%08x" % f2u(x)

def srd_from_ptr(a, sd, sp, nbytes, off=0):
    if off:
        a(f"s_add_u32 s{sd}, s{sp}, 0x{off:x}")
        a(f"s_addc_u32 s{sd+1}, s{sp+1}, 0")
        a(f"s_and_b32 s{sd+1}, s{sd+1}, 0xffff")
    else:
        a(f"s_mov_b32 s{sd}, s{sp}")
        a(f"s_and_b32 s{sd+1}, s{sp+1}, 0xffff")
    a(f"s_mov_b32 s{sd+2}, 0x{nbytes:x}")
    a(f"s_mov_b32 s{sd+3}, 0x00020000")

def srd_table(a, sd, lbl):
    a(f"s_getpc_b64 s[{sd}:{sd+1}]")
    a.raw(f"{lbl}:")
    a(f"s_add_u32 s{sd}, s{sd}, TWTAB-{lbl}")
    a(f"s_addc_u32 s{sd+1}, s{sd+1}, 0")
    a(f"s_and_b32 s{sd+1}, s{sd+1}, 0xffff")
    a(f"s_mov_b32 s{sd+2}, {TAB_SIZE}")
    a(f"s_mov_b32 s{sd+3}, 0x00020000")

def P(i): return f"v[{i}:{i+1}]"

def cadd(a, d, x, y): a(f"v_pk_add_f32 {P(d)}, {P(x)}, {P(y)}")
def csub(a, d, x, y): a(f"v_pk_add_f32 {P(d)}, {P(x)}, {P(y)} neg_lo:[0,1] neg_hi:[0,1]")
def cadd_mi(a, d, x, y):
    a(f"v_pk_add_f32 {P(d)}, {P(x)}, {P(y)} op_sel:[0,1] op_sel_hi:[1,0] neg_hi:[0,1]")
def cadd_pi(a, d, x, y):
    a(f"v_pk_add_f32 {P(d)}, {P(x)}, {P(y)} op_sel:[0,1] op_sel_hi:[1,0] neg_lo:[0,1]")
def cmul(a, d, x, w, conj=False):
    assert d != x
    a(f"v_pk_mul_f32 {P(d)}, {P(x)}, {P(w)} op_sel:[0,0] op_sel_hi:[1,0]")
    if not conj:
        a(f"v_pk_fma_f32 {P(d)}, {P(x)}, {P(w)}, {P(d)} op_sel:[1,1,0] op_sel_hi:[0,1,1] neg_lo:[1,0,0]")
    else:
        a(f"v_pk_fma_f32 {P(d)}, {P(x)}, {P(w)}, {P(d)} op_sel:[1,1,0] op_sel_hi:[0,1,1] neg_hi:[1,0,0]")

def bfly8(a, A, B, sR, inv=False):
    mi = cadd_pi if inv else cadd_mi
    pi_ = cadd_mi if inv else cadd_pi
    for j in range(4):
        cadd(a, B[j], A[j], A[j+4])
        csub(a, B[j+4], A[j], A[j+4])
    mi(a, A[0], B[5], B[5])
    a(f"v_pk_mul_f32 {P(B[5])}, {P(A[0])}, s[{sR}:{sR+1}]")
    pi_(a, A[1], B[7], B[7])
    a(f"v_pk_mul_f32 {P(B[7])}, {P(A[1])}, s[{sR}:{sR+1}] neg_lo:[1,0] neg_hi:[1,0]")
    cadd(a, A[0], B[0], B[2]); csub(a, A[1], B[0], B[2])
    cadd(a, A[2], B[1], B[3]); csub(a, A[3], B[1], B[3])
    mi(a, A[4], B[4], B[6]); pi_(a, A[5], B[4], B[6])
    cadd(a, A[6], B[5], B[7]); csub(a, A[7], B[5], B[7])
    cadd(a, B[0], A[0], A[2]); csub(a, B[4], A[0], A[2])
    mi(a, B[2], A[1], A[3]); pi_(a, B[6], A[1], A[3])
    cadd(a, B[1], A[4], A[6]); csub(a, B[5], A[4], A[6])
    mi(a, B[3], A[5], A[7]); pi_(a, B[7], A[5], A[7])

def bfly4(a, A, B, inv=False):
    mi = cadd_pi if inv else cadd_mi
    pi_ = cadd_mi if inv else cadd_pi
    cadd(a, B[0], A[0], A[2]); csub(a, B[1], A[0], A[2])
    cadd(a, B[2], A[1], A[3]); csub(a, B[3], A[1], A[3])
    cadd(a, A[0], B[0], B[2]); csub(a, A[2], B[0], B[2])
    mi(a, A[1], B[1], B[3]); pi_(a, A[3], B[1], B[3])

def wave_sum(a, r, sdst):
    for sh in (1, 2, 4, 8):
        a(f"v_add_f32_dpp v{r}, v{r}, v{r} row_shr:{sh} row_mask:0xf bank_mask:0xf bound_ctrl:0")
    a(f"v_add_f32_dpp v{r}, v{r}, v{r} row_bcast:15 row_mask:0xa bank_mask:0xf")
    a(f"v_add_f32_dpp v{r}, v{r}, v{r} row_bcast:31 row_mask:0xc bank_mask:0xf")
    a(f"v_readlane_b32 s{sdst}, v{r}, 63")

T_R1 = 0; T_R2 = 4096; T_C1 = 4608; T_C2 = 20992; T_C3 = 23040; TAB_SIZE = 23296
def twiddle_table():
    out = [".p2align 8", ".type TWTAB,@object", "TWTAB:"]
    def w(N, j):
        th = 2*math.pi*(j % N)/N
        return f"{fhex(math.cos(th))}, {fhex(-math.sin(th))}"
    for (N, cnt) in ((512, 64), (64, 8), (2048, 256), (256, 32), (32, 4)):
        for q in range(4):
            for l in range(cnt):
                out.append(f".long {w(N, l*2*q)}, {w(N, l*(2*q+1))}")
    out.append(f".size TWTAB, {TAB_SIZE}")
    return "\n".join(out) + "\n"

def load_tw(a, dst, vaddr, srd, base, cnt):
    for q in range(4):
        off = base + q*cnt*16
        if off < 4096:
            a(f"buffer_load_dwordx4 v[{dst+4*q}:{dst+4*q+3}], v{vaddr}, s[{srd}:{srd+3}], 0 offen offset:{off}")
        else:
            a(f"s_mov_b32 s3, {off}")
            a(f"buffer_load_dwordx4 v[{dst+4*q}:{dst+4*q+3}], v{vaddr}, s[{srd}:{srd+3}], s3 offen")

def kernel_desc(name, vgpr, sgpr=102):
    acc = (vgpr + 3)//4*4
    return f""".amdhsa_kernel {name}
  .amdhsa_next_free_vgpr {vgpr}
  .amdhsa_next_free_sgpr {sgpr}
  .amdhsa_accum_offset {acc}
  .amdhsa_group_segment_fixed_size 0
  .amdhsa_kernarg_size 80
  .amdhsa_user_sgpr_count 2
  .amdhsa_user_sgpr_kernarg_segment_ptr 1
  .amdhsa_system_sgpr_workgroup_id_x 1
.end_amdhsa_kernel
"""

def kcol(t, r):
    k0 = t >> 5; k1 = (t >> 2) & 7; k2h = t & 3
    k2l = r >> 2; k3 = r & 3
    return k0 + 8*k1 + 64*(2*k2h + k2l) + 512*k3

import os
STAMP = os.environ.get("STAMP", "")
def stamp(a, i, kern):
    if STAMP == kern: a(f"s_memtime s[{80+2*i}:{81+2*i}]")
_sfc = [0]
def stamp_flush(a, n, kern, wg):
    if STAMP != kern: return
    a("s_waitcnt vmcnt(0) lgkmcnt(0)")
    a(f"s_memtime s[{80+2*n}:{81+2*n}]")
    a("s_load_dwordx2 s[76:77], s[0:1], 64")
    a("s_waitcnt lgkmcnt(0)")
    a(f"s_cmp_eq_u32 s2, {wg}")
    _sfc[0] += 1
    a(f"s_cbranch_scc0 L_nostamp_{kern}{_sfc[0]}")
    srd_from_ptr(a, 76, 76, 512)
    a("v_lshrrev_b32 v1, 6, v0"); a("v_and_b32 v1, 7, v1"); a("v_lshlrev_b32 v1, 6, v1")
    for i in range(n+1):
        a(f"s_sub_u32 s3, s{80+2*i}, s80")
        a("v_mov_b32 v2, s3")
        a(f"buffer_store_dword v2, v1, s[76:79], 0 offen offset:{4*i}")
    a.label(f"L_nostamp_{kern}{_sfc[0]}")
```

```python
from gen_common import *
import os
OPT = set(os.environ.get("OPT", "").split(","))

R2 = 1.0/math.sqrt(2.0)

def ln_two_rows(a, A, T, sT):
    t0, t1, M, Rv = T, T+2, T+4, T+6
    cadd(a, t0, A[0], A[1]); cadd(a, t1, A[2], A[3]); cadd(a, t0, t0, t1)
    cadd(a, t1, A[4], A[5]); cadd(a, t0, t0, t1); cadd(a, t1, A[6], A[7]); cadd(a, t0, t0, t1)
    wave_sum(a, t0, sT); wave_sum(a, t0+1, sT+1)
    a(f"v_mov_b32 v{M}, s{sT}"); a(f"v_mov_b32 v{M+1}, s{sT+1}")
    a(f"v_mul_f32 v{M}, {fhex(1/512)}, v{M}"); a(f"v_mul_f32 v{M+1}, {fhex(1/512)}, v{M+1}")
    for j in range(8):
        csub(a, t1, A[j], M)
        if j == 0: a(f"v_pk_mul_f32 {P(t0)}, {P(t1)}, {P(t1)}")
        else: a(f"v_pk_fma_f32 {P(t0)}, {P(t1)}, {P(t1)}, {P(t0)}")
    wave_sum(a, t0, sT+2); wave_sum(a, t0+1, sT+3)
    a(f"v_mov_b32 v{Rv}, s{sT+2}"); a(f"v_mov_b32 v{Rv+1}, s{sT+3}")
    a(f"v_mul_f32 v{Rv}, {fhex(1/512)}, v{Rv}"); a(f"v_mul_f32 v{Rv+1}, {fhex(1/512)}, v{Rv+1}")
    def rnd(p):
        a(f"v_cvt_pk_bf16_f32 v{t1}, v{p}, v{p+1}")
        a(f"v_lshlrev_b32 v{p}, 16, v{t1}")
        a(f"v_and_b32 v{p+1}, 0xffff0000, v{t1}")
    rnd(Rv)
    a(f"v_add_f32 v{Rv}, {fhex(1e-5)}, v{Rv}"); a(f"v_add_f32 v{Rv+1}, {fhex(1e-5)}, v{Rv+1}")
    rnd(Rv)
    a(f"v_sqrt_f32 v{Rv}, v{Rv}"); a(f"v_sqrt_f32 v{Rv+1}, v{Rv+1}")
    rnd(Rv)
    a(f"v_rcp_f32 v{Rv}, v{Rv}"); a(f"v_rcp_f32 v{Rv+1}, v{Rv+1}")
    rnd(M)
    for j in range(8):
        csub(a, A[j], A[j], M)
        rnd(A[j])
        a(f"v_pk_mul_f32 {P(A[j])}, {P(A[j])}, {P(Rv)}")
        rnd(A[j])

def k1_fft_role(a):
    A = [8+2*i for i in range(8)]; B = [24+2*i for i in range(8)]
    TW1 = [40+2*i for i in range(7)]; TW2 = [54+2*i for i in range(7)]
    T = 68
    a("s_load_dwordx4 s[4:7], s[0:1], 0")
    a("s_load_dwordx2 s[8:9], s[0:1], 16")
    a("s_load_dwordx2 s[10:11], s[0:1], 48")
    a("s_load_dwordx2 s[12:13], s[0:1], 72")
    srd_table(a, 20, "L_k1_pc")
    a(f"s_mov_b32 s48, {fhex(R2)}"); a(f"s_mov_b32 s49, {fhex(R2)}")
    a("v_and_b32 v1, 63, v0")
    a("v_lshrrev_b32 v2, 6, v0")
    a("v_readfirstlane_b32 s50, v2")
    a("v_lshlrev_b32 v3, 5, v1")
    a("v_and_b32 v4, 7, v1")
    a("v_lshlrev_b32 v4, 8, v4")
    a("v_mov_b32 v5, v3"); a("v_mov_b32 v6, v4")
    for k in range(1, 8):
        a(f"buffer_load_dwordx2 {P(TW1[k-1])}, v5, s[20:23], 0 offen")
        a(f"buffer_load_dwordx2 {P(TW2[k-1])}, v6, s[20:23], 0 offen")
        if k < 7:
            a("v_add_u32 v5, v5, v3"); a("v_add_u32 v6, v6, v4")
    a("s_waitcnt lgkmcnt(0)")
    srd_from_ptr(a, 16, 4, 2048*1024)
    srd_from_ptr(a, 24, 12, SZ_Y1T, WS_Y1T)
    srd_from_ptr(a, 28, 6, 2048*514)
    srd_from_ptr(a, 32, 8, 2048*514)
    srd_from_ptr(a, 36, 12, SZ_WT, WS_WT)
    srd_from_ptr(a, 40, 10, 1376*1024)
    srd_from_ptr(a, 44, 12, SZ_WD, WS_WD)
    a("s_lshl_b32 s51, s2, 3"); a("s_lshl_b32 s52, s50, 1"); a("s_add_u32 s51, s51, s52")
    a("s_lshl_b32 s53, s51, 10")
    a("v_lshlrev_b32 v5, 1, v1"); a("v_add_u32 v5, s53, v5")
    for j in range(8):
        a(f"buffer_load_ushort v{A[j]}, v5, s[16:19], 0 offen offset:{128*j}")
        a(f"buffer_load_ushort v{A[j]+1}, v5, s[16:19], 0 offen offset:{128*j+1024}")
    WV = 90
    a("s_lshr_b32 s54, s2, 5")
    a("s_lshr_b32 s55, s2, 2"); a("s_and_b32 s55, s55, 7"); a("s_lshl_b32 s55, s55, 3")
    a("s_and_b32 s56, s2, 3"); a("s_lshl_b32 s56, s56, 7")
    a("s_add_u32 s54, s54, s55"); a("s_add_u32 s54, s54, s56")
    a("s_mul_i32 s54, s54, 514")
    a("v_lshlrev_b32 v6, 1, v0")
    for r in range(8):
        koff = (64*(r >> 2) + 512*(r & 3))*514
        a(f"s_add_u32 s55, s54, {koff}")
        a(f"buffer_load_ushort v{WV+2*r}, v6, s[28:31], s55 offen")
        a(f"buffer_load_ushort v{WV+2*r+1}, v6, s[32:35], s55 offen")
    a("v_and_b32 v140, 7, v0"); a("v_lshrrev_b32 v141, 2, v140"); a("v_and_b32 v142, 3, v140")
    a("v_mul_u32_u24 v141, 32896, v141"); a("v_mul_u32_u24 v142, 263168, v142"); a("v_add_u32 v141, v141, v142")
    a("buffer_load_ushort v143, v141, s[28:31], s54 offen offset:512")
    a("buffer_load_ushort v144, v141, s[32:35], s54 offen offset:512")
    DV = 114
    a("s_lshl_b32 s57, s2, 2"); a("s_add_u32 s57, s57, s50")
    a("v_and_b32 v7, 31, v1"); a("v_lshlrev_b32 v7, 1, v7")
    a("v_lshrrev_b32 v2, 5, v1"); a("v_lshlrev_b32 v2, 12, v2"); a("v_add_u32 v7, v7, v2")
    a("v_add_u32 v2, 0x2000, v7")
    def wd_loads(sf, dv):
        a(f"s_lshr_b32 s58, s{sf}, 4"); a("s_lshl_b32 s58, s58, 14")
        a(f"s_and_b32 s59, s{sf}, 15"); a("s_lshl_b32 s59, s59, 6"); a("s_add_u32 s58, s58, s59")
        for e in range(8):
            a(f"buffer_load_ushort v{dv+e}, v{7 if e < 4 else 2}, s[40:43], s58 offen offset:{1024*(e&3)}")
    wd_loads(57, DV)
    a("s_add_u32 s60, s57, 1024")
    wd_loads(60, DV+8)
    a("s_waitcnt vmcnt(34)")
    for j in range(8):
        a(f"v_lshlrev_b32 v{A[j]}, 16, v{A[j]}"); a(f"v_lshlrev_b32 v{A[j]+1}, 16, v{A[j]+1}")
    ln_two_rows(a, A, T, 62)
    a("s_mul_i32 s61, s50, 4864")
    a("v_lshlrev_b32 v80, 3, v1"); a("v_add_u32 v80, s61, v80")
    a("v_lshrrev_b32 v5, 3, v1"); a("v_and_b32 v6, 7, v1")
    a("v_mul_u32_u24 v81, 72, v5"); a("v_add_u32 v82, v81, v6"); a("v_lshlrev_b32 v82, 3, v82"); a("v_add_u32 v82, s61, v82")
    a("v_mul_u32_u24 v83, 9, v6"); a("v_add_u32 v83, v83, v81"); a("v_lshlrev_b32 v83, 3, v83"); a("v_add_u32 v83, s61, v83")
    a("v_lshlrev_b32 v84, 3, v6"); a("v_add_u32 v84, v84, v5"); a("v_lshlrev_b32 v84, 3, v84"); a("v_add_u32 v84, s61, v84")
    a("v_sub_u32 v85, 320, v1"); a("v_lshlrev_b32 v85, 3, v85"); a("v_add_u32 v85, s61, v85")
    bfly8(a, A, B, 48)
    for k in range(1, 8): cmul(a, A[k], B[k], TW1[k-1])
    a(f"ds_write_b64 v80, {P(B[0])}")
    for k in range(1, 8): a(f"ds_write_b64 v80, {P(A[k])} offset:{576*k}")
    for n1 in range(8): a(f"ds_read_b64 {P(A[n1])}, v82 offset:{64*n1}")
    a("s_waitcnt lgkmcnt(0)")
    bfly8(a, A, B, 48)
    for k in range(1, 8): cmul(a, A[k], B[k], TW2[k-1])
    a(f"ds_write_b64 v82, {P(B[0])}")
    for k in range(1, 8): a(f"ds_write_b64 v82, {P(A[k])} offset:{72*k}")
    for n0 in range(8): a(f"ds_read_b64 {P(A[n0])}, v83 offset:{8*n0}")
    a("s_waitcnt lgkmcnt(0)")
    bfly8(a, A, B, 48)
    for k2 in range(8): a(f"ds_write_b64 v84, {P(B[k2])} offset:{512*k2}")
    a(f"ds_write_b64 v84, {P(B[4])} offset:4096")
    Z = A[0:4]; ZM = A[4:8]
    for j in range(4):
        a(f"ds_read_b64 {P(Z[j])}, v80 offset:{512*j}")
        a(f"ds_read_b64 {P(ZM[j])}, v85 offset:{512*(3-j)}")
    a("s_waitcnt lgkmcnt(0)")
    O = [24+4*j for j in range(4)]
    for j in range(4):
        a(f"v_pk_add_f32 {P(O[j])}, {P(Z[j])}, {P(ZM[j])} neg_hi:[0,1]")
        a(f"v_pk_add_f32 {P(O[j]+2)}, {P(Z[j])}, {P(ZM[j])} op_sel:[1,1] op_sel_hi:[0,0] neg_hi:[1,0]")
    a("v_cmp_eq_u32 vcc, 0, v1")
    a(f"v_add_f32 v{T}, v{Z[0]}, v{Z[0]}"); a(f"v_add_f32 v{T+1}, v{ZM[0]}, v{ZM[0]}")
    a(f"v_add_f32 v{T+2}, v{Z[0]+1}, v{Z[0]+1}"); a(f"v_add_f32 v{T+3}, v{ZM[0]+1}, v{ZM[0]+1}")
    for q in range(4): a(f"v_cndmask_b32 v{O[0]+q}, v{O[0]+q}, v{T+q}, vcc")
    a(f"v_mul_u32_u24 v5, {CSTR}, v1"); a("s_lshl_b32 s53, s51, 3"); a("v_add_u32 v5, s53, v5")
    for j in range(4):
        a(f"s_mov_b32 s55, 0x{j*64*CSTR:x}")
        if "noY1" not in OPT: a(f"buffer_store_dwordx4 v[{O[j]}:{O[j]+3}], v5, s[24:27], s55 offen")
    if "noW" in OPT:
        a("s_endpgm"); return
    a("s_waitcnt vmcnt(20)" if "noY1" not in OPT else "s_waitcnt vmcnt(16)")
    for r in range(8): a(f"v_lshl_or_b32 v{WV+16+r}, v{WV+2*r+1}, 16, v{WV+2*r}")
    a("v_lshlrev_b32 v6, 13, v0"); a("s_lshl_b32 s55, s2, 5")
    a(f"buffer_store_dwordx4 v[{WV+16}:{WV+19}], v6, s[36:39], s55 offen")
    a(f"buffer_store_dwordx4 v[{WV+20}:{WV+23}], v6, s[36:39], s55 offen offset:16")
    a("v_lshl_or_b32 v143, v144, 16, v143")
    a("v_lshlrev_b32 v140, 2, v140"); a("s_add_u32 s55, s55, 0x200000")
    a("buffer_store_dword v143, v140, s[36:39], s55 offen")
    a("s_waitcnt vmcnt(0)")
    a("v_lshlrev_b32 v7, 4, v1")
    for half, sf in ((0, 57), (1, 60)):
        dv = DV + 8*half
        for q in range(4): a(f"v_lshl_or_b32 v{132+4*half+q}, v{dv+2*q+1}, 16, v{dv+2*q}")
        a(f"s_lshl_b32 s58, s{sf}, 10")
        a(f"buffer_store_dwordx4 v[{132+4*half}:{135+4*half}], v7, s[44:47], s58 offen")
    a("s_endpgm")

K2_X1F = 0; K2_XW = 16384; K2_X1I = 36864; K2_COL_LDS = 53248

def k2_col_role(a):
    A = [8+2*i for i in range(8)]; B = [24+2*i for i in range(8)]
    TW1 = [40+2*i for i in range(7)]; TW2 = [54+2*i for i in range(7)]; TW3 = [68+2*i for i in range(7)]
    WW = 82
    W2 = 110
    stamp(a, 0, "k2")
    a("s_load_dwordx2 s[12:13], s[0:1], 72")
    srd_table(a, 20, "L_k2_pc")
    a(f"s_mov_b32 s48, {fhex(R2)}"); a(f"s_mov_b32 s49, {fhex(R2)}")
    a("v_lshlrev_b32 v3, 3, v0")
    a("v_and_b32 v4, 31, v0"); a("v_lshlrev_b32 v4, 6, v4")
    a("v_and_b32 v5, 3, v0"); a("v_lshlrev_b32 v5, 9, v5")
    a("v_mov_b32 v90, v3"); a("v_mov_b32 v91, v4"); a("v_mov_b32 v92, v5")
    a("s_waitcnt lgkmcnt(0)")
    stamp(a, 1, "k2")
    srd_from_ptr(a, 24, 12, SZ_Y1T, WS_Y1T)
    srd_from_ptr(a, 28, 12, SZ_Y2T, WS_Y2T)
    srd_from_ptr(a, 36, 12, SZ_WT, WS_WT)
    a(f"s_mul_i32 s50, s2, {CSTR}")
    a("v_add_u32 v6, 0x1000, v3"); a("v_add_u32 v7, 0x2000, v3"); a("v_add_u32 v93, 0x3000, v3")
    AV = [3, 6, 7, 93]
    for j in range(8):
        a(f"buffer_load_dwordx2 {P(A[j])}, v{AV[j//2]}, s[24:27], s50 offen offset:{2048*(j&1)}")
    for k in range(1, 8):
        a(f"buffer_load_dwordx2 {P(TW1[k-1])}, v90, s[20:23], 0 offen")
        if k < 7: a("v_add_u32 v90, v90, v3")
    for k in range(1, 8):
        a(f"buffer_load_dwordx2 {P(TW2[k-1])}, v91, s[20:23], 0 offen")
        a(f"buffer_load_dwordx2 {P(TW3[k-1])}, v92, s[20:23], 0 offen")
        if k < 7:
            a("v_add_u32 v91, v91, v4"); a("v_add_u32 v92, v92, v5")
    a("s_lshl_b32 s51, s2, 13")
    a("v_lshlrev_b32 v90, 5, v0")
    a(f"buffer_load_dwordx4 v[{WW}:{WW+3}], v90, s[36:39], s51 offen")
    a(f"buffer_load_dwordx4 v[{WW+4}:{WW+7}], v90, s[36:39], s51 offen offset:16")
    a("s_mov_b32 s52, 0x200000")
    a(f"buffer_load_dwordx4 v[{W2}:{W2+3}], v90, s[36:39], s52 offen")
    a(f"buffer_load_dwordx4 v[{W2+4}:{W2+7}], v90, s[36:39], s52 offen offset:16")
    a("v_lshrrev_b32 v94, 5, v0"); a("v_and_b32 v95, 31, v0")
    a("v_lshlrev_b32 v96, 8, v94"); a("v_add_u32 v96, v96, v95"); a("v_lshlrev_b32 v96, 3, v96")
    a("v_lshrrev_b32 v97, 6, v0"); a("v_mul_u32_u24 v97, 5120, v97"); a(f"v_add_u32 v97, {K2_XW}, v97")
    a("v_and_b32 v98, 1, v94"); a("v_mul_u32_u24 v98, 288, v98")
    a("v_add_u32 v99, v98, v95"); a("v_lshlrev_b32 v99, 3, v99"); a("v_add_u32 v99, v99, v97")
    a("v_lshrrev_b32 v100, 2, v95"); a("v_mul_u32_u24 v100, 36, v100"); a("v_and_b32 v101, 3, v0")
    a("v_add_u32 v100, v100, v101"); a("v_add_u32 v100, v100, v98"); a("v_lshlrev_b32 v100, 3, v100"); a("v_add_u32 v100, v100, v97")
    a("v_and_b32 v102, 63, v0"); a("v_lshrrev_b32 v102, 2, v102"); a("v_mul_u32_u24 v102, 20, v102")
    a("v_mul_u32_u24 v103, 5, v101"); a("v_add_u32 v103, v103, v102"); a("v_lshlrev_b32 v103, 4, v103"); a("v_add_u32 v103, v103, v97")
    a("v_add_u32 v104, v102, v101"); a("v_lshlrev_b32 v104, 4, v104"); a("v_add_u32 v104, v104, v97")
    stamp(a, 2, "k2")
    a("s_waitcnt vmcnt(18)")
    stamp(a, 3, "k2")
    bfly8(a, A, B, 48)
    for k in range(1, 8): cmul(a, A[k], B[k], TW1[k-1])
    a(f"ds_write_b64 v3, {P(B[0])} offset:{K2_X1F}")
    for k in range(1, 8): a(f"ds_write_b64 v3, {P(A[k])} offset:{K2_X1F+2048*k}")
    a("s_waitcnt lgkmcnt(0)"); a("s_barrier")
    for n2 in range(8): a(f"ds_read_b64 {P(A[n2])}, v96 offset:{K2_X1F+256*n2}")
    stamp(a, 4, "k2")
    a("s_waitcnt vmcnt(4) lgkmcnt(0)")
    stamp(a, 5, "k2")
    bfly8(a, A, B, 48)
    for k in range(1, 8): cmul(a, A[k], B[k], TW2[k-1])
    a(f"ds_write_b64 v99, {P(B[0])}")
    for k in range(1, 8): a(f"ds_write_b64 v99, {P(A[k])} offset:{288*k}")
    for n1 in range(8): a(f"ds_read_b64 {P(A[n1])}, v100 offset:{32*n1}")
    a("s_waitcnt lgkmcnt(0)")
    bfly8(a, A, B, 48)
    a(f"v_mov_b32 v{A[0]}, v{B[0]}"); a(f"v_mov_b32 v{A[0]+1}, v{B[0]+1}")
    for k in range(1, 8): cmul(a, A[k], B[k], TW3[k-1])
    for q in range(4): a(f"ds_write_b128 v103, v[{A[2*q]}:{A[2*q]+3}] offset:{16*q}")
    for n0 in range(4): a(f"ds_read_b128 v[{B[2*n0]}:{B[2*n0]+3}], v104 offset:{80*n0}")
    a("s_waitcnt lgkmcnt(0)")
    E = [B[0], B[2], B[4], B[6]]; O = [B[1], B[3], B[5], B[7]]
    bfly4(a, E, A[0:4]); bfly4(a, O, A[4:8])
    Zr = E + O
    a("s_waitcnt vmcnt(0)")
    a("s_cmp_eq_u32 s2, 0")
    a("s_cbranch_scc1 L_k2_special")
    for r in range(8):
        a(f"v_lshlrev_b32 v106, 16, v{WW+r}"); a(f"v_and_b32 v107, 0xffff0000, v{WW+r}")
        cmul(a, A[r], Zr[r], 106)
    a.label("L_k2_back")
    stamp(a, 6, "k2")
    bfly4(a, A[0:4], B[0:4], inv=True); bfly4(a, A[4:8], B[4:8], inv=True)
    for n0 in range(4):
        a(f"v_pk_mov_b32 {P(B[2*n0])}, {P(A[n0])}, {P(A[n0])} op_sel:[0,1]")
        a(f"v_pk_mov_b32 {P(B[2*n0+1])}, {P(A[4+n0])}, {P(A[4+n0])} op_sel:[0,1]")
    for n0 in range(4): a(f"ds_write_b128 v104, v[{B[2*n0]}:{B[2*n0]+3}] offset:{80*n0}")
    for q in range(4): a(f"ds_read_b128 v[{B[2*q]}:{B[2*q]+3}], v103 offset:{16*q}")
    a("s_waitcnt lgkmcnt(0)")
    a(f"v_mov_b32 v{A[0]}, v{B[0]}"); a(f"v_mov_b32 v{A[0]+1}, v{B[0]+1}")
    for k in range(1, 8): cmul(a, A[k], B[k], TW3[k-1], conj=True)
    bfly8(a, A, B, 48, inv=True)
    for n1 in range(8): a(f"ds_write_b64 v100, {P(B[n1])} offset:{32*n1}")
    for k in range(8): a(f"ds_read_b64 {P(B[k])}, v99 offset:{288*k}")
    a("s_waitcnt lgkmcnt(0)")
    a(f"v_mov_b32 v{A[0]}, v{B[0]}"); a(f"v_mov_b32 v{A[0]+1}, v{B[0]+1}")
    for k in range(1, 8): cmul(a, A[k], B[k], TW2[k-1], conj=True)
    bfly8(a, A, B, 48, inv=True)
    for n2 in range(8): a(f"ds_write_b64 v96, {P(B[n2])} offset:{K2_X1I+256*n2}")
    a("s_waitcnt lgkmcnt(0)"); a("s_barrier")
    for k in range(8): a(f"ds_read_b64 {P(B[k])}, v3 offset:{K2_X1I+2048*k}")
    a("s_waitcnt lgkmcnt(0)")
    a(f"v_mov_b32 v{A[0]}, v{B[0]}"); a(f"v_mov_b32 v{A[0]+1}, v{B[0]+1}")
    for k in range(1, 8): cmul(a, A[k], B[k], TW1[k-1], conj=True)
    bfly8(a, A, B, 48, inv=True)
    stamp(a, 7, "k2")
    for j in range(8):
        a(f"buffer_store_dwordx2 {P(B[j])}, v{AV[j//2]}, s[28:31], s50 offen offset:{2048*(j&1)}")
    stamp_flush(a, 8, "k2", 5)
    a("s_endpgm")
    a.label("L_k2_special")
    a("v_lshrrev_b32 v106, 2, v0"); a("v_and_b32 v106, 7, v106"); a("v_lshlrev_b32 v106, 3, v106")
    a("v_add_u32 v106, v106, v94"); a("v_lshlrev_b32 v107, 7, v101"); a("v_add_u32 v106, v106, v107")
    a("s_barrier")
    a("v_lshlrev_b32 v107, 4, v106")
    for r in range(8):
        ko = 64*(r >> 2) + 512*(r & 3)
        a(f"v_mov_b32 v120, v{Zr[r]}"); a(f"v_mov_b32 v121, v{Zr[r]+1}"); a(f"v_mov_b32 v122, v{WW+r}"); a(f"v_mov_b32 v123, v{W2+r}")
        a(f"ds_write_b128 v107, v[120:123] offset:{16*ko}")
    a("s_waitcnt lgkmcnt(0)"); a("s_barrier")
    M = 124
    for r in range(8):
        ko = 64*(r >> 2) + 512*(r & 3)
        a(f"v_sub_u32 v107, {2048-ko}, v106"); a("v_and_b32 v107, 2047, v107"); a("v_lshlrev_b32 v107, 4, v107")
        a(f"ds_read_b128 v[{M+4*r}:{M+4*r+3}], v107")
    a("s_waitcnt lgkmcnt(0)"); a("s_barrier")
    for r in range(8):
        m = M + 4*r
        a(f"v_lshlrev_b32 v106, 16, v{WW+r}"); a(f"v_and_b32 v107, 0xffff0000, v{WW+r}")
        a(f"v_lshlrev_b32 v108, 16, v{W2+r}"); a(f"v_and_b32 v109, 0xffff0000, v{W2+r}")
        a(f"v_lshlrev_b32 v118, 16, v{m+2}"); a(f"v_and_b32 v119, 0xffff0000, v{m+2}")
        a(f"v_lshlrev_b32 v120, 16, v{m+3}"); a(f"v_and_b32 v121, 0xffff0000, v{m+3}")
        a("v_pk_add_f32 v[106:107], v[106:107], v[118:119] neg_hi:[0,1]")
        a("v_pk_add_f32 v[108:109], v[108:109], v[120:121] neg_hi:[0,1]")
        cadd(a, 118, 106, 108); csub(a, 120, 106, 108)
        a("v_mul_f32 v118, 0.25, v118"); a("v_mul_f32 v119, 0.25, v119"); a("v_mul_f32 v120, 0.25, v120"); a("v_mul_f32 v121, 0.25, v121")
        cmul(a, A[r], Zr[r], 118)
        cmul(a, 122, 120, m, conj=True)
        cadd(a, A[r], A[r], 122)
    a("s_branch L_k2_back")

K3_LDS = 4*5120
def k3_role(a):
    A = [8+2*i for i in range(8)]; B = [24+2*i for i in range(8)]
    TW1 = [40+2*i for i in range(7)]; TW2 = [54+2*i for i in range(7)]
    Y = 68
    XV = 100; GV = 108
    a("s_load_dwordx2 s[4:5], s[0:1], 0")
    a("s_load_dwordx2 s[6:7], s[0:1], 56")
    a("s_load_dwordx2 s[12:13], s[0:1], 72")
    srd_table(a, 20, "L_k3_pc")
    a(f"s_mov_b32 s48, {fhex(R2)}"); a(f"s_mov_b32 s49, {fhex(R2)}")
    a("v_and_b32 v1, 63, v0")
    a("v_lshrrev_b32 v2, 6, v0")
    a("v_readfirstlane_b32 s50, v2")
    a("s_lshl_b32 s51, s2, 3"); a("s_lshl_b32 s52, s50, 1"); a("s_add_u32 s51, s51, s52")
    a("v_lshrrev_b32 v5, 3, v1"); a("v_and_b32 v6, 7, v1")
    a("v_lshlrev_b32 v7, 3, v6"); a("v_add_u32 v7, v7, v5")
    a(f"v_mul_u32_u24 v116, {CSTR}, v7")
    a(f"v_sub_u32 v117, {64*CSTR}, v116")
    a("s_waitcnt lgkmcnt(0)")
    srd_from_ptr(a, 16, 4, 2048*1024)
    srd_from_ptr(a, 24, 6, 2048*1024)
    srd_from_ptr(a, 28, 12, SZ_Y2T, WS_Y2T)
    srd_from_ptr(a, 32, 12, SZ_G, WS_G)
    a("s_lshl_b32 s53, s51, 3")
    a("v_sub_u32 v118, 256, v7"); a("v_and_b32 v118, 255, v118"); a(f"v_mul_u32_u24 v118, {CSTR}, v118")
    for k2 in range(4):
        a(f"s_add_u32 s54, s53, {64*k2*CSTR}")
        a(f"buffer_load_dwordx4 v[{Y+4*k2}:{Y+4*k2+3}], v116, s[28:31], s54 offen")
    a(f"buffer_load_dwordx4 v[{Y+16}:{Y+19}], v118, s[28:31], s53 offen")
    for k2 in range(5, 8):
        a(f"s_add_u32 s54, s53, {64*(7-k2)*CSTR}")
        a(f"buffer_load_dwordx4 v[{Y+4*k2}:{Y+4*k2+3}], v117, s[28:31], s54 offen")
    a("v_lshlrev_b32 v3, 5, v1")
    a("v_lshlrev_b32 v4, 8, v6")
    a("v_mov_b32 v119, v3"); a("v_mov_b32 v120, v4")
    for k in range(1, 8):
        a(f"buffer_load_dwordx2 {P(TW2[k-1])}, v120, s[20:23], 0 offen")
        if k < 7: a("v_add_u32 v120, v120, v4")
    for k in range(1, 8):
        a(f"buffer_load_dwordx2 {P(TW1[k-1])}, v119, s[20:23], 0 offen")
        if k < 7: a("v_add_u32 v119, v119, v3")
    a("s_lshl_b32 s55, s51, 10")
    a("v_lshlrev_b32 v121, 4, v1")
    a(f"buffer_load_dwordx4 v[{XV}:{XV+3}], v121, s[16:19], s55 offen")
    a(f"buffer_load_dwordx4 v[{XV+4}:{XV+7}], v121, s[16:19], s55 offen offset:1024")
    a(f"buffer_load_dwordx4 v[{GV}:{GV+3}], v121, s[32:35], s55 offen")
    a(f"buffer_load_dwordx4 v[{GV+4}:{GV+7}], v121, s[32:35], s55 offen offset:1024")
    a("s_mul_i32 s61, s50, 5120")
    a("v_lshlrev_b32 v122, 3, v1"); a("v_add_u32 v122, s61, v122")
    a("v_mul_u32_u24 v123, 72, v5"); a("v_add_u32 v124, v123, v6"); a("v_lshlrev_b32 v124, 3, v124"); a("v_add_u32 v124, s61, v124")
    a("v_mul_u32_u24 v125, 9, v6"); a("v_add_u32 v125, v125, v123"); a("v_lshlrev_b32 v125, 3, v125"); a("v_add_u32 v125, s61, v125")
    a("v_lshlrev_b32 v126, 4, v5"); a("v_add_u32 v126, v126, v122")
    a("v_mul_u32_u24 v127, 80, v1"); a("v_add_u32 v127, s61, v127")
    a("s_waitcnt vmcnt(18)")
    for k2 in range(4):
        y = Y + 4*k2
        cadd_pi(a, A[k2], y, y+2)
    for k2 in range(4, 8):
        y = Y + 4*k2
        a(f"v_pk_add_f32 {P(A[k2])}, {P(y)}, {P(y+2)} op_sel:[0,1] op_sel_hi:[1,0] neg_hi:[1,0]")
    a("v_cmp_eq_u32 vcc, 0, v1")
    a(f"v_cndmask_b32 v{A[0]}, v{A[0]}, v{Y}, vcc"); a(f"v_cndmask_b32 v{A[0]+1}, v{A[0]+1}, v{Y+2}, vcc")
    a(f"v_cndmask_b32 v{A[4]}, v{A[4]}, v{Y+17}, vcc"); a(f"v_cndmask_b32 v{A[4]+1}, v{A[4]+1}, v{Y+19}, vcc")
    bfly8(a, A, B, 48, inv=True)
    for n0 in range(8): a(f"ds_write_b64 v125, {P(B[n0])} offset:{8*n0}")
    for k in range(8): a(f"ds_read_b64 {P(B[k])}, v124 offset:{72*k}")
    a("s_waitcnt vmcnt(11) lgkmcnt(0)")
    a(f"v_mov_b32 v{A[0]}, v{B[0]}"); a(f"v_mov_b32 v{A[0]+1}, v{B[0]+1}")
    for k in range(1, 8): cmul(a, A[k], B[k], TW2[k-1], conj=True)
    bfly8(a, A, B, 48, inv=True)
    for n1 in range(8): a(f"ds_write_b64 v124, {P(B[n1])} offset:{64*n1}")
    for k in range(8): a(f"ds_read_b64 {P(B[k])}, v122 offset:{576*k}")
    a("s_waitcnt vmcnt(4) lgkmcnt(0)")
    a(f"v_mov_b32 v{A[0]}, v{B[0]}"); a(f"v_mov_b32 v{A[0]+1}, v{B[0]+1}")
    for k in range(1, 8): cmul(a, A[k], B[k], TW1[k-1], conj=True)
    bfly8(a, A, B, 48, inv=True)
    for j in range(8): a(f"ds_write_b64 v126, {P(B[j])} offset:{640*j}")
    for q in range(4): a(f"ds_read_b128 v[{A[2*q]}:{A[2*q]+3}], v127 offset:{16*q}")
    sc = 1.0/(2*2048*512)
    a(f"s_mov_b32 s46, {fhex(sc)}"); a(f"s_mov_b32 s47, {fhex(sc)}")
    a("s_waitcnt vmcnt(0) lgkmcnt(0)")
    for e in range(8): a(f"v_pk_mul_f32 {P(A[e])}, {P(A[e])}, s[46:47]")
    OUT = 128
    for row in range(2):
        for q in range(4):
            e0, e1 = A[2*q]+row, A[2*q+1]+row
            t = 40
            a(f"v_cvt_pk_bf16_f32 v{t}, v{e0}, v{e1}")
            a(f"v_lshlrev_b32 v{t+2}, 16, v{t}"); a(f"v_and_b32 v{t+3}, 0xffff0000, v{t}")
            g = GV + 4*row + q; x = XV + 4*row + q
            a(f"v_lshlrev_b32 v{t+4}, 16, v{g}"); a(f"v_and_b32 v{t+5}, 0xffff0000, v{g}")
            a(f"v_pk_mul_f32 {P(t+2)}, {P(t+2)}, {P(t+4)}")
            a(f"v_cvt_pk_bf16_f32 v{t}, v{t+2}, v{t+3}")
            a(f"v_lshlrev_b32 v{t+2}, 16, v{t}"); a(f"v_and_b32 v{t+3}, 0xffff0000, v{t}")
            a(f"v_lshlrev_b32 v{t+4}, 16, v{x}"); a(f"v_and_b32 v{t+5}, 0xffff0000, v{x}")
            a(f"v_pk_add_f32 {P(t+2)}, {P(t+2)}, {P(t+4)}")
            a(f"v_cvt_pk_bf16_f32 v{OUT+4*row+q}, v{t+2}, v{t+3}")
    a(f"buffer_store_dwordx4 v[{OUT}:{OUT+3}], v121, s[24:27], s55 offen")
    a(f"buffer_store_dwordx4 v[{OUT+4}:{OUT+7}], v121, s[24:27], s55 offen offset:1024")
    a("s_endpgm")
```

```python
from gen_common import *
from gen_fft import ln_two_rows
R2 = 1.0/math.sqrt(2.0)

HS = 12352; STG = 2*HS; NSLOT = 5
L_XS = 2*STG
L_FFT = NSLOT*STG; FREG = 4928
L_WJ = L_FFT + 4*FREG
L_ST = L_WJ + 64*144
K1_LDS = L_ST + 2048
K1_VGPR = 256

XN = 128; ACC = 32; AF = 192
VXA = 100
VFA = 104
VWD = 252
VS = 112

def x_setup(a):
    a("v_lshrrev_b32 v5, 4, v1"); a("v_and_b32 v6, 15, v1")
    for i in range(4):
        a(f"v_add_u32 v7, {4*i}, v5")
        a("v_xor_b32 v2, v6, v7"); a("v_lshlrev_b32 v2, 4, v2")
        a(f"v_lshl_add_u32 v{VXA+i}, v7, 10, v2")
    a("s_lshl_b32 s53, s70, 7"); a("s_lshl_b32 s3, s51, 5"); a("s_add_u32 s53, s53, s3"); a("s_lshl_b32 s53, s53, 10")
    a("s_lshl_b32 s3, s52, 9"); a("s_add_u32 s53, s53, s3")
    a("s_lshl_b32 s54, s50, 13"); a(f"s_add_u32 s54, s54, {L_XS}")
    a("v_and_b32 v5, 31, v1"); a("v_lshrrev_b32 v6, 5, v1")
    a("v_lshlrev_b32 v7, 8, v5"); a("v_add_u32 v7, s54, v7")
    a("v_and_b32 v2, 15, v5"); a("v_xor_b32 v2, v2, v6")
    for f in range(8):
        a(f"v_xor_b32 v{VFA+f}, {2*f}, v2"); a(f"v_lshl_add_u32 v{VFA+f}, v{VFA+f}, 4, v7")

def x_dma(a, rnd):
    for i in range(8):
        a(f"s_add_u32 m0, s54, {1024*i}")
        a(f"s_add_u32 s3, s53, {256*rnd + 16384*(i >> 2)}")
        a(f"buffer_load_dwordx4 v{VXA+(i&3)}, s[20:23], s3 offen lds")

def x_read(a, rnd):
    for f in range(8):
        d = XN + 32*rnd + 4*f
        a(f"ds_read_b128 v[{d}:{d+3}], v{VFA+f}")

def x_stats(a, rnd):
    if rnd == 0:
        a(f"v_mov_b32 v{VS+4}, 0x3f803f80")
    for i in range(32):
        r = XN + 32*rnd + i
        if rnd == 0 and i < 2:
            a(f"v_dot2_f32_bf16 v{VS+(i&1)}, v{r}, v{VS+4}, 0")
            a(f"v_dot2_f32_bf16 v{VS+2+(i&1)}, v{r}, v{r}, 0")
        else:
            a(f"v_dot2_f32_bf16 v{VS+(i&1)}, v{r}, v{VS+4}, v{VS+(i&1)}")
            a(f"v_dot2_f32_bf16 v{VS+2+(i&1)}, v{r}, v{r}, v{VS+2+(i&1)}")

def x_stats_fin(a):
    a(f"v_add_f32 v{VS}, v{VS}, v{VS+1}"); a(f"v_add_f32 v{VS+1}, v{VS+2}, v{VS+3}")
    a(f"v_mov_b32 v{VS+2}, v{VS}"); a(f"v_mov_b32 v{VS+3}, v{VS+1}")
    a(f"v_permlane32_swap_b32 v{VS}, v{VS+2}"); a(f"v_permlane32_swap_b32 v{VS+1}, v{VS+3}")
    a(f"v_add_f32 v{VS}, v{VS}, v{VS+2}"); a(f"v_add_f32 v{VS+1}, v{VS+1}, v{VS+3}")
    a("v_and_b32 v5, 31, v1"); a("v_lshlrev_b32 v5, 3, v5")
    a("s_lshl_b32 s3, s50, 8"); a(f"s_add_u32 s3, s3, {L_ST}"); a("v_add_u32 v6, s3, v5")
    a("s_xor_b32 s3, s50, 4"); a("s_lshl_b32 s3, s3, 8"); a(f"s_add_u32 s3, s3, {L_ST}"); a(f"v_add_u32 v{VS+5}, s3, v5")
    a(f"ds_write_b64 v6, v[{VS}:{VS+1}]")

def w_setup(a):
    a("s_lshr_b32 s55, s50, 1"); a("s_and_b32 s55, s55, 1")
    a("s_and_b32 s56, s50, 1")
    a("s_cmp_eq_u32 s55, 0")
    a("s_cselect_b32 s72, s10, s12"); a("s_cselect_b32 s73, s11, s13")
    a("s_and_b32 s73, s73, 0xffff"); a(f"s_mov_b32 s74, {512*2752}"); a("s_mov_b32 s75, 0x00020000")
    for p in range(3):
        a(f"v_add_u32 v{VWD+p}, {p*64}, v1")
        a(f"v_mul_u32_u24 v5, 0x5556, v{VWD+p}"); a("v_lshrrev_b32 v5, 18, v5")
        a(f"v_mul_u32_u24 v6, 12, v5"); a(f"v_sub_u32 v6, v{VWD+p}, v6")
        a(f"v_mul_u32_u24 v5, 2752, v5"); a(f"v_lshl_add_u32 v{VWD+p}, v6, 4, v5")
    a("s_lshl_b32 s57, s52, 8"); a("s_lshl_b32 s59, s56, 4"); a("s_add_u32 s57, s57, s59"); a("s_mul_i32 s57, s57, 2752")
    a("s_mul_i32 s59, s71, 6"); a("s_min_u32 s59, s59, 80"); a("s_lshl_b32 s60, s59, 5"); a("s_add_u32 s57, s57, s60")
    a(f"s_mul_i32 s58, s52, {HS}"); a("s_mul_i32 s60, s55, 6176"); a("s_add_u32 s58, s58, s60")
    a("s_mul_i32 s60, s56, 3072"); a("s_add_u32 s58, s58, s60")

def w_dma(stage):
    L = []
    for p in range(3):
        L.append(f"s_add_u32 m0, s58, {(stage % NSLOT)*STG + p*1024}")
        L.append(f"buffer_load_dwordx4 v{VWD+p}, s[72:75], s57 offen lds")
    L.append(f"s_add_u32 s57, s57, {32*2752}")
    return L

def gemm_only(a, tag, fn):
    a("s_cmp_ge_u32 s71, 15"); a(f"s_cbranch_scc1 L_k1_sk{tag}")
    fn()
    a.label(f"L_k1_sk{tag}")

def k1_fft_pre(a):
    A = [8+2*i for i in range(8)]; B = [24+2*i for i in range(8)]
    TW1 = [40+2*i for i in range(8)]; TW2 = [56+2*i for i in range(8)]
    T = 72
    a("s_lshl_b32 s62, s49, 3"); a("s_lshl_b32 s3, s50, 1"); a("s_add_u32 s62, s62, s3")
    a("s_lshl_b32 s62, s62, 10")
    a("v_lshlrev_b32 v5, 1, v1")
    for j in range(8):
        a(f"buffer_load_ushort v{A[j]}, v5, s[20:23], s62 offen offset:{128*j}")
        a(f"buffer_load_ushort v{A[j]+1}, v5, s[20:23], s62 offen offset:{128*j+1024}")
    def f0():
        x_setup(a); x_dma(a, 0); w_setup(a)
        for st in range(2):
            for t in w_dma(st): a(t)
    gemm_only(a, "f0", f0)
    a(f"s_mul_i32 s61, s50, {FREG}"); a(f"s_add_u32 s61, s61, {L_FFT}")
    a("v_lshlrev_b32 v84, 3, v1"); a("v_add_u32 v84, s61, v84")
    a("v_lshrrev_b32 v5, 3, v1"); a("v_and_b32 v6, 7, v1")
    a("v_mul_u32_u24 v85, 72, v5"); a("v_add_u32 v86, v85, v6"); a("v_lshlrev_b32 v86, 3, v86"); a("v_add_u32 v86, s61, v86")
    a("v_mul_u32_u24 v87, 9, v6"); a("v_add_u32 v87, v87, v85"); a("v_lshlrev_b32 v87, 3, v87"); a("v_add_u32 v87, s61, v87")
    a("v_lshlrev_b32 v88, 3, v6"); a("v_add_u32 v88, v88, v5"); a("v_lshlrev_b32 v88, 3, v88"); a("v_add_u32 v88, s61, v88")
    a("s_cmp_ge_u32 s71, 15"); a("s_cbranch_scc0 L_k1_fw")
    a("s_waitcnt vmcnt(0)")
    a.label("L_k1_fw")
    a("s_waitcnt vmcnt(14)")
    stamp(a, 1, "k1")
    for j in range(8):
        a(f"v_lshlrev_b32 v{A[j]}, 16, v{A[j]}"); a(f"v_lshlrev_b32 v{A[j]+1}, 16, v{A[j]+1}")
    ln_two_rows(a, A, T, 66)
    def f1():
        a("s_waitcnt vmcnt(6)")
        x_read(a, 0)
    gemm_only(a, "f1", f1)
    bfly8(a, A, B, 64)
    for k in range(1, 8): cmul(a, A[k], B[k], TW1[k])
    def f2():
        a("s_waitcnt lgkmcnt(0)")
        x_dma(a, 1)
    gemm_only(a, "f2", f2)
    a(f"ds_write_b64 v84, {P(B[0])}")
    for k in range(1, 8): a(f"ds_write_b64 v84, {P(A[k])} offset:{576*k}")
    for n1 in range(8): a(f"ds_read_b64 {P(A[n1])}, v86 offset:{64*n1}")
    a("s_waitcnt lgkmcnt(0)")
    bfly8(a, A, B, 64)
    for k in range(1, 8): cmul(a, A[k], B[k], TW2[k])
    a(f"ds_write_b64 v86, {P(B[0])}")
    for k in range(1, 8): a(f"ds_write_b64 v86, {P(A[k])} offset:{72*k}")
    for n0 in range(8): a(f"ds_read_b64 {P(A[n0])}, v87 offset:{8*n0}")
    x_stats(a, 0)
    a("s_waitcnt lgkmcnt(0)")
    bfly8(a, A, B, 64)
    for k2 in range(8): a(f"ds_write_b64 v88, {P(B[k2])} offset:{512*k2}")
    a(f"ds_write_b64 v88, {P(B[4])} offset:4096")

def k1_fft_part2(a):
    Z = [8+2*i for i in range(4)]; ZM = [16+2*i for i in range(4)]
    T = 72
    a("v_lshrrev_b32 v5, 2, v0"); a("v_and_b32 v6, 3, v0")
    a(f"v_mul_u32_u24 v7, {FREG}, v6"); a(f"v_add_u32 v7, {L_FFT}, v7")
    a("v_lshlrev_b32 v84, 3, v5"); a("v_add_u32 v84, v84, v7")
    a("v_sub_u32 v85, 320, v5"); a("v_lshlrev_b32 v85, 3, v85"); a("v_add_u32 v85, v85, v7")
    for j in range(4):
        a(f"ds_read_b64 {P(Z[j])}, v84 offset:{512*j}")
        a(f"ds_read_b64 {P(ZM[j])}, v85 offset:{512*(3-j)}")
    a("s_waitcnt lgkmcnt(0)")
    O = [24+4*j for j in range(4)]
    for j in range(4):
        a(f"v_pk_add_f32 {P(O[j])}, {P(Z[j])}, {P(ZM[j])} neg_hi:[0,1]")
        a(f"v_pk_add_f32 {P(O[j]+2)}, {P(Z[j])}, {P(ZM[j])} op_sel:[1,1] op_sel_hi:[0,0] neg_hi:[1,0]")
    a("v_cmp_eq_u32 vcc, 0, v5")
    a(f"v_add_f32 v{T}, v{Z[0]}, v{Z[0]}"); a(f"v_add_f32 v{T+1}, v{ZM[0]}, v{ZM[0]}")
    a(f"v_add_f32 v{T+2}, v{Z[0]+1}, v{Z[0]+1}"); a(f"v_add_f32 v{T+3}, v{ZM[0]+1}, v{ZM[0]+1}")
    for q in range(4): a(f"v_cndmask_b32 v{O[0]+q}, v{O[0]+q}, v{T+q}, vcc")
    a("v_lshlrev_b32 v5, 4, v0"); a(f"s_mul_i32 s3, s49, {RS}")
    for j in range(4):
        a(f"buffer_store_dwordx4 v[{O[j]}:{O[j]+3}], v5, s[28:31], s3 offen")
        if j < 3: a("s_add_u32 s3, s3, 4096")

def k1_aux_pre(a):
    def f0():
        x_setup(a); x_dma(a, 0); w_setup(a)
        for st in range(2):
            for t in w_dma(st): a(t)
        a("s_waitcnt vmcnt(6)")
        stamp(a, 1, "k1")
        x_read(a, 0)
        a("s_waitcnt lgkmcnt(0)")
        x_dma(a, 1)
        x_stats(a, 0)
    gemm_only(a, "a0", f0)

WV = 200; XC = 216; DV = 221; WP = 238; DP = 8
def k1_aux_loads(a):
    srd_from_ptr(a, 32, 6, 2048*514)
    srd_from_ptr(a, 36, 8, 2048*514)
    srd_from_ptr(a, 40, 16, SZ_WT, WS_WT)
    srd_from_ptr(a, 44, 14, 1376*1024)
    srd_from_ptr(a, 24, 16, SZ_WD, WS_WD)
    a("s_and_b32 s62, s2, 0xfc"); a("s_add_u32 s62, s62, s51")
    a("s_lshr_b32 s63, s62, 5")
    a("s_lshr_b32 s3, s62, 2"); a("s_and_b32 s3, s3, 7"); a("s_lshl_b32 s3, s3, 3"); a("s_add_u32 s63, s63, s3")
    a("s_and_b32 s3, s62, 3"); a("s_lshl_b32 s3, s3, 7"); a("s_add_u32 s63, s63, s3")
    a("s_mul_i32 s63, s63, 514")
    a("s_and_b32 s66, s2, 3"); a("s_lshl_b32 s66, s66, 7"); a("s_add_u32 s66, s66, s63")
    a("v_lshlrev_b32 v6, 1, v1")
    for r in range(8):
        koff = (64*(r >> 2) + 512*(r & 3))*514
        a(f"s_add_u32 s3, s66, {koff}")
        a(f"buffer_load_ushort v{WV+2*r}, v6, s[32:35], s3 offen")
        a(f"buffer_load_ushort v{WV+2*r+1}, v6, s[36:39], s3 offen")
    a(f"v_and_b32 v{XC}, 7, v1"); a(f"v_lshrrev_b32 v{XC+1}, 2, v{XC}"); a(f"v_and_b32 v{XC+2}, 3, v{XC}")
    a(f"v_mul_u32_u24 v{XC+1}, 32896, v{XC+1}"); a(f"v_mul_u32_u24 v{XC+2}, 263168, v{XC+2}"); a(f"v_add_u32 v{XC+1}, v{XC+1}, v{XC+2}")
    a(f"buffer_load_ushort v{XC+3}, v{XC+1}, s[32:35], s63 offen offset:512")
    a(f"buffer_load_ushort v{XC+4}, v{XC+1}, s[36:39], s63 offen offset:512")
    a("s_lshl_b32 s67, s2, 2"); a("s_add_u32 s67, s67, s51")
    a("v_and_b32 v7, 31, v1"); a("v_lshlrev_b32 v7, 1, v7")
    a("v_lshrrev_b32 v2, 5, v1"); a("v_lshlrev_b32 v2, 12, v2"); a("v_add_u32 v7, v7, v2")
    a("v_add_u32 v2, 0x2000, v7")
    def wd_loads(sf, dv):
        a(f"s_lshr_b32 s69, s{sf}, 4"); a("s_lshl_b32 s69, s69, 14")
        a(f"s_and_b32 s3, s{sf}, 15"); a("s_lshl_b32 s3, s3, 6"); a("s_add_u32 s69, s69, s3")
        for e in range(8):
            a(f"buffer_load_ushort v{dv+e}, v{7 if e < 4 else 2}, s[44:47], s69 offen offset:{1024*(e&3)}")
    wd_loads(67, DV)
    a("s_add_u32 s68, s67, 1024")
    wd_loads(68, DV+8)

def k1_aux_fin1(a):
    for r in range(8): a(f"v_lshl_or_b32 v{WP+r}, v{WV+2*r+1}, 16, v{WV+2*r}")
    a("v_mul_u32_u24 v6, 144, v1"); a("s_lshl_b32 s3, s51, 5"); a(f"s_add_u32 s3, s3, {L_WJ}"); a("v_add_u32 v6, s3, v6")
    a(f"ds_write_b128 v6, v[{WP}:{WP+3}]"); a(f"ds_write_b128 v6, v[{WP+4}:{WP+7}] offset:16")
    a(f"v_lshl_or_b32 v{XC+3}, v{XC+4}, 16, v{XC+3}")
    a(f"v_lshlrev_b32 v{XC}, 2, v{XC}"); a("s_lshl_b32 s69, s62, 5"); a("s_add_u32 s69, s69, 0x200000")
    for half in (0, 1):
        dv = DV + 8*half
        for q in range(4): a(f"v_lshl_or_b32 v{DP+4*half+q}, v{dv+2*q+1}, 16, v{dv+2*q}")
    a(f"buffer_store_dword v{XC+3}, v{XC}, s[40:43], s69 offen")
    for half, sf in ((0, 67), (1, 68)):
        a(f"s_lshl_b32 s3, s{sf}, 10")
        a(f"buffer_store_dwordx4 v[{DP+4*half}:{DP+3+4*half}], v3, s[24:27], s3 offen")

def k1_aux_part2(a):
    a("v_lshrrev_b32 v5, 3, v1"); a("v_and_b32 v6, 7, v1"); a("s_lshl_b32 s3, s51, 4"); a("v_add_u32 v5, s3, v5")
    a("v_mul_u32_u24 v7, 144, v5"); a("v_lshlrev_b32 v6, 4, v6"); a("v_add_u32 v7, v7, v6")
    a(f"v_add_u32 v7, {L_WJ}, v7")
    a("ds_read_b128 v[16:19], v7"); a(f"ds_read_b128 v[20:23], v7 offset:{8*144}")
    a("v_lshlrev_b32 v5, 13, v5"); a("v_add_u32 v5, v5, v6")
    a("s_and_b32 s62, s2, 3"); a("s_lshl_b32 s62, s62, 19")
    a("s_lshr_b32 s63, s2, 2"); a("s_lshl_b32 s63, s63, 7"); a("s_add_u32 s62, s62, s63")
    a("s_add_u32 s63, s62, 0x10000")
    a("s_waitcnt lgkmcnt(0)")
    a("buffer_store_dwordx4 v[16:19], v5, s[40:43], s62 offen")
    a("buffer_store_dwordx4 v[20:23], v5, s[40:43], s63 offen")

C1 = -2.0*math.sqrt(2.0/math.pi)*math.log2(math.e)
C2 = C1*0.044715

def norm_ops(j):
    r = [XN + 4*j + q for q in range(4)]
    t = [8 + 2*q for q in range(4)]
    L = []
    for q in range(4):
        L += [f"v_dot2_f32_bf16 v{t[q]}, v{r[q]}, v242, v240", f"v_dot2_f32_bf16 v{t[q]+1}, v{r[q]}, v243, v240"]
    for q in range(4): L += [f"v_cvt_pk_bf16_f32 v{r[q]}, v{t[q]}, v{t[q]+1}"]
    for q in range(4): L += [f"v_lshlrev_b32 v{t[q]}, 16, v{r[q]}", f"v_and_b32 v{t[q]+1}, 0xffff0000, v{r[q]}"]
    for q in range(4): L += [f"v_mul_f32 v{t[q]}, v{t[q]}, v241", f"v_mul_f32 v{t[q]+1}, v{t[q]+1}, v241"]
    for q in range(4): L += [f"v_cvt_pk_bf16_f32 v{r[q]}, v{t[q]}, v{t[q]+1}"]
    return L

def k1_epilogue(a, keep, other, wait0):
    a(f"v_mov_b32 v10, {fhex(C1)}"); a(f"v_mov_b32 v11, {fhex(C1)}")
    a(f"s_mov_b32 s60, {fhex(C2)}"); a(f"s_mov_b32 s61, {fhex(C2)}")
    for u in range(3):
        a(f"s_waitcnt lgkmcnt({8-4*u})")
        c = keep + 16*u; o = other + 16*u
        for i in range(0, 16, 2): a(f"v_pk_add_f32 {P(c+i)}, {P(c+i)}, {P(o+i)}")
        T = 128 + 24*u
        for i in range(0, 8, 2):
            g = c + i; up = c + 8 + i; t = T + 2*i
            a(f"v_cvt_pk_bf16_f32 v{t}, v{g}, v{g+1}"); a(f"v_cvt_pk_bf16_f32 v{t+1}, v{up}, v{up+1}")
        for i in range(0, 8, 2):
            g = c + i; up = c + 8 + i; t = T + 2*i
            a(f"v_lshlrev_b32 v{g}, 16, v{t}"); a(f"v_and_b32 v{g+1}, 0xffff0000, v{t}")
            a(f"v_lshlrev_b32 v{up}, 16, v{t+1}"); a(f"v_and_b32 v{up+1}, 0xffff0000, v{t+1}")
        for i in range(0, 8, 2):
            g = c + i; t = T + 2*i
            a(f"v_pk_mul_f32 {P(t)}, {P(g)}, {P(g)}")
        for i in range(0, 8, 2):
            t = T + 2*i
            a(f"v_pk_fma_f32 {P(t)}, {P(t)}, s[60:61], v[10:11]")
        for i in range(0, 8, 2):
            g = c + i; t = T + 2*i
            a(f"v_pk_mul_f32 {P(t)}, {P(t)}, {P(g)}")
        for i in range(0, 8, 2):
            t = T + 2*i
            a(f"v_exp_f32 v{t}, v{t}"); a(f"v_exp_f32 v{t+1}, v{t+1}")
        for i in range(0, 8, 2):
            t = T + 2*i
            a(f"v_pk_add_f32 {P(t)}, {P(t)}, 1.0 op_sel_hi:[1,0]")
        for i in range(0, 8, 2):
            t = T + 2*i
            a(f"v_rcp_f32 v{t}, v{t}"); a(f"v_rcp_f32 v{t+1}, v{t+1}")
        for i in range(0, 8, 2):
            g = c + i; t = T + 2*i
            a(f"v_pk_mul_f32 {P(g)}, {P(g)}, {P(t)}")
        for i in range(0, 8, 2):
            g = c + i; t = T + 2*i
            a(f"v_cvt_pk_bf16_f32 v{t}, v{g}, v{g+1}")
        for i in range(0, 8, 2):
            g = c + i; t = T + 2*i
            a(f"v_lshlrev_b32 v{g}, 16, v{t}"); a(f"v_and_b32 v{g+1}, 0xffff0000, v{t}")
        for i in range(0, 8, 2):
            g = c + i; up = c + 8 + i
            a(f"v_pk_mul_f32 {P(g)}, {P(g)}, {P(up)}")
        for i in range(0, 8, 2):
            g = c + i
            a(f"v_cvt_pk_bf16_f32 v{T+16+i//2}, v{g}, v{g+1}")
        if u == 0 and wait0: a("s_waitcnt vmcnt(0)")
        a(f"buffer_store_dwordx4 v[{T+16}:{T+19}], v3, s[76:79], s59 offen")
        if u < 2: a("s_add_u32 s59, s59, 0x10000")

def k1_gemm(a):
    stamp(a, 4, "k1")
    for st in range(2, 5):
        for t in w_dma(st): a(t)
    stamp(a, 5, "k1")
    a(f"ds_read_b64 v[26:27], v{VS+5}")
    a("v_lshrrev_b32 v8, 4, v1"); a("v_and_b32 v9, 1, v8"); a("v_lshrrev_b32 v8, 1, v8")
    a("v_and_b32 v10, 15, v1"); a("v_lshrrev_b32 v11, 2, v10"); a("v_and_b32 v10, 3, v10")
    a("v_lshl_add_u32 v8, v8, 3, v11"); a("v_mul_u32_u24 v8, 192, v8"); a("v_mul_u32_u24 v9, 6176, v9"); a("v_add_u32 v8, v8, v9")
    a("v_lshl_add_u32 v8, v10, 3, v8"); a(f"s_mul_i32 s60, s52, {HS}"); a("v_add_u32 v248, s60, v8")
    a(f"v_add_u32 v249, {2*STG}, v248"); a(f"v_add_u32 v250, {4*STG}, v248")
    def rd(stage, kk, u, buf):
        slot = stage % NSLOT
        base = 248 + slot//2
        off = (slot & 1)*STG + kk*3072 + u*32
        d = AF + 24*buf + 4*u
        return [f"ds_read_b64_tr_b16 v[{d}:{d+1}], v{base} offset:{off}", f"ds_read_b64_tr_b16 v[{d+2}:{d+3}], v{base} offset:{off+768}"]
    for u in range(6):
        for t in rd(0, 0, u, 0): a(t)
    a("v_mov_b32 v242, 0x00003f80"); a("v_mov_b32 v243, 0x3f800000")
    a("s_waitcnt lgkmcnt(12)")
    a(f"v_add_f32 v24, v{VS}, v26"); a(f"v_add_f32 v25, v{VS+1}, v27")
    a(f"v_mul_f32 v24, {fhex(1/512)}, v24"); a(f"v_mul_f32 v25, {fhex(1/512)}, v25")
    a("v_fma_f32 v25, -v24, v24, v25")
    a("v_max_f32 v25, 0, v25")
    a("v_cvt_pk_bf16_f32 v26, v24, v25")
    a("v_lshlrev_b32 v240, 16, v26"); a("v_and_b32 v25, 0xffff0000, v26")
    a("v_xor_b32 v240, 0x80000000, v240")
    a(f"v_add_f32 v25, {fhex(1e-5)}, v25")
    a("v_cvt_pk_bf16_f32 v26, v25, v25"); a("v_lshlrev_b32 v25, 16, v26")
    a("v_sqrt_f32 v25, v25")
    a("v_cvt_pk_bf16_f32 v26, v25, v25"); a("v_lshlrev_b32 v25, 16, v26")
    a("v_rcp_f32 v241, v25")
    for t in norm_ops(0): a(t)
    stamp(a, 6, "k1")
    for j in range(16):
        st, kk = j >> 1, j & 1
        fill = norm_ops(j+1) if j < 15 else []
        nst, nkk = (j+1) >> 1, (j+1) & 1
        for u in range(6):
            if kk == 1 and u == 0 and st < 7:
                n_out = 3*max(0, min(7, max(4, st+3)) - (st+1))
                if st > 0: a(f"s_waitcnt vmcnt({n_out})")
                a("s_barrier")
                if st >= 1 and st+4 < 8:
                    for t in w_dma(st+4): a(t)
            a("s_waitcnt lgkmcnt(10)")
            x = XN + 4*j; d = AF + 24*(j & 1) + 4*u; c = ACC + 16*u
            cs = "0" if j == 0 else f"v[{c}:{c+15}]"
            a(f"v_mfma_f32_32x32x16_bf16 v[{c}:{c+15}], v[{d}:{d+3}], v[{x}:{x+3}], {cs}")
            if j < 15:
                for t in rd(nst, nkk, u, (j+1) & 1): a(t)
            elif u < 5:
                a(f"s_waitcnt lgkmcnt({max(0, 8-2*u)})")
            n = (len(fill) + (5-u)) // (6-u)
            for t in fill[:n]: a(t)
            fill = fill[n:]
    stamp(a, 7, "k1")
    a("s_barrier")
    a("s_mul_i32 s60, s50, 12288"); a("v_add_u32 v8, s60, v3")
    a("s_xor_b32 s60, s50, 4"); a("s_mul_i32 s60, s60, 12288"); a("v_add_u32 v9, s60, v3")
    a("s_mul_i32 s60, s52, 3"); a("s_add_u32 s59, s59, s60"); a("s_lshl_b32 s59, s59, 16")
    a("s_lshl_b32 s60, s70, 2"); a("s_add_u32 s60, s60, s51"); a("s_lshl_b32 s60, s60, 10"); a("s_add_u32 s59, s59, s60")
    a("s_cmp_eq_u32 s52, 0"); a("s_cbranch_scc1 L_k1_kh0")
    for kh in (1, 0):
        if kh == 0: a.label("L_k1_kh0")
        keep = ACC + 48*kh; oth = ACC + 48*(1-kh)
        if kh == 1: k1_aux_loads(a)
        for q in range(12): a(f"ds_write_b128 v8, v[{oth+4*q}:{oth+4*q+3}] offset:{1024*q}")
        a("s_waitcnt lgkmcnt(0)"); a("s_barrier")
        for q in range(12): a(f"ds_read_b128 v[{oth+4*q}:{oth+4*q+3}], v9 offset:{1024*q}")
        k1_epilogue(a, keep, oth, kh == 1)
        stamp(a, 8, "k1")
        if kh == 1:
            k1_aux_fin1(a)
            a("s_waitcnt lgkmcnt(0)")
        a("s_barrier")
        if kh == 1: k1_aux_part2(a)
        stamp_flush(a, 9, "k1", 5)
        a("s_endpgm")

def k1_kernel(a):
    stamp(a, 0, "k1")
    a("s_load_dwordx4 s[4:7], s[0:1], 0")
    a("s_load_dwordx2 s[8:9], s[0:1], 16")
    a("s_load_dwordx2 s[10:11], s[0:1], 32"); a("s_load_dwordx2 s[12:13], s[0:1], 40")
    a("s_load_dwordx2 s[14:15], s[0:1], 48")
    a("s_load_dwordx2 s[16:17], s[0:1], 72")
    srd_table(a, 24, "L_k1_pc")
    a(f"s_mov_b32 s64, {fhex(R2)}"); a(f"s_mov_b32 s65, {fhex(R2)}")
    a("v_and_b32 v1, 63, v0")
    a("v_lshrrev_b32 v2, 6, v0")
    a("v_readfirstlane_b32 s50, v2")
    a("v_lshlrev_b32 v3, 4, v1")
    a("s_and_b32 s70, s2, 3"); a("s_lshl_b32 s70, s70, 2"); a("s_lshr_b32 s3, s2, 3"); a("s_and_b32 s3, s3, 3"); a("s_add_u32 s70, s70, s3")
    a("s_and_b32 s71, s2, 4"); a("s_lshl_b32 s71, s71, 1"); a("s_lshr_b32 s3, s2, 5"); a("s_add_u32 s71, s71, s3")
    a("s_lshl_b32 s49, s70, 4"); a("s_add_u32 s49, s49, s71")
    a("s_and_b32 s51, s50, 3")
    a("s_lshr_b32 s52, s50, 2")
    a("s_cmp_ge_u32 s50, 4"); a("s_cbranch_scc1 L_k1_aux")
    a("v_and_b32 v4, 7, v1"); a("v_lshlrev_b32 v4, 4, v4")
    load_tw(a, 40, 3, 24, T_R1, 64)
    load_tw(a, 56, 4, 24, T_R2, 8)
    a("s_waitcnt lgkmcnt(0)")
    srd_from_ptr(a, 20, 4, 2048*1024)
    srd_from_ptr(a, 28, 16, SZ_Y1T, WS_Y1T)
    k1_fft_pre(a)
    def fin():
        a("s_waitcnt vmcnt(0)")
        x_read(a, 1)
        a("s_waitcnt lgkmcnt(0)")
        x_stats(a, 1)
        x_stats_fin(a)
    gemm_only(a, "f3", fin)
    stamp(a, 2, "k1")
    a("s_waitcnt lgkmcnt(0)")
    a("s_barrier")
    stamp(a, 3, "k1")
    k1_fft_part2(a)
    a("s_cmp_lt_u32 s71, 15"); a("s_cbranch_scc1 L_k1_join")
    a("s_barrier")
    a("s_endpgm")
    a.label("L_k1_aux")
    a("s_waitcnt lgkmcnt(0)")
    srd_from_ptr(a, 20, 4, 2048*1024)
    k1_aux_pre(a)
    gemm_only(a, "a3", fin)
    stamp(a, 2, "k1")
    a("s_waitcnt lgkmcnt(0)")
    a("s_barrier")
    stamp(a, 3, "k1")
    a("s_cmp_lt_u32 s71, 15"); a("s_cbranch_scc1 L_k1_join")
    k1_aux_loads(a)
    a("s_waitcnt vmcnt(0)")
    k1_aux_fin1(a)
    a("s_waitcnt lgkmcnt(0)")
    a("s_barrier")
    k1_aux_part2(a)
    a("s_endpgm")
    a.label("L_k1_join")
    srd_from_ptr(a, 76, 16, SZ_H, WS_H)
    k1_gemm(a)
```

```python
from gen_common import *
R2 = 1.0/math.sqrt(2.0)

def xcd_pair(a, dst, src):
    a(f"s_lshr_b32 s3, s{src}, 3"); a("s_and_b32 s3, s3, 1")
    a(f"s_and_b32 s{dst+1}, s{src}, 7"); a(f"s_lshl_b32 s{dst+1}, s{dst+1}, 1"); a(f"s_or_b32 s3, s3, s{dst+1}")
    a(f"s_and_b32 s{dst+1}, s{src}, 0xf0"); a(f"s_or_b32 s{dst}, s3, s{dst+1}")

K2_X1F = 0; K2_XW = 16384; K2_X1I = 36864; K2_COL_LDS = 53248

def k2_col_role(a):
    A = [8+2*i for i in range(8)]; B = [24+2*i for i in range(8)]
    TW1 = [40+2*i for i in range(8)]; TW2 = [56+2*i for i in range(8)]; TW3 = [72+2*i for i in range(8)]
    WW = 88
    W2 = 112
    stamp(a, 0, "k2")
    a("s_load_dwordx2 s[12:13], s[0:1], 72")
    xcd_pair(a, 14, 2)
    srd_table(a, 20, "L_k2_pc")
    a(f"s_mov_b32 s48, {fhex(R2)}"); a(f"s_mov_b32 s49, {fhex(R2)}")
    a("v_lshlrev_b32 v3, 3, v0")
    a("v_lshlrev_b32 v4, 4, v0")
    a("v_and_b32 v5, 31, v0"); a("v_lshlrev_b32 v6, 4, v5")
    a("v_and_b32 v101, 3, v0"); a("v_lshlrev_b32 v7, 4, v101")
    load_tw(a, TW1[0], 4, 20, T_C1, 256)
    a("v_lshrrev_b32 v96, 3, v0"); a(f"v_mul_u32_u24 v96, {RS}, v96"); a("v_and_b32 v97, 7, v0"); a("v_lshlrev_b32 v97, 3, v97"); a("v_add_u32 v96, v96, v97")
    a("s_waitcnt lgkmcnt(0)")
    stamp(a, 1, "k2")
    srd_from_ptr(a, 24, 12, SZ_Y1T, WS_Y1T)
    a("s_lshl_b32 s50, s14, 6")
    for j in range(8):
        a(f"buffer_load_dwordx2 {P(A[j])}, v96, s[24:27], s50 offen")
        if j < 7: a(f"s_add_u32 s50, s50, {32*RS}")
    load_tw(a, TW2[0], 6, 20, T_C2, 32)
    load_tw(a, TW3[0], 7, 20, T_C3, 4)
    srd_from_ptr(a, 28, 12, SZ_Y2T, WS_Y2T)
    srd_from_ptr(a, 36, 12, SZ_WT, WS_WT)
    a(f"s_mul_i32 s50, s14, {CSTR}")
    a("v_add_u32 v6, 0x1000, v3"); a("v_add_u32 v7, 0x2000, v3"); a("v_add_u32 v105, 0x3000, v3")
    AV = [3, 6, 7, 105]
    a("s_lshl_b32 s51, s14, 13")
    a("v_lshlrev_b32 v96, 5, v0")
    a(f"buffer_load_dwordx4 v[{WW}:{WW+3}], v96, s[36:39], s51 offen")
    a(f"buffer_load_dwordx4 v[{WW+4}:{WW+7}], v96, s[36:39], s51 offen offset:16")
    a("s_mov_b32 s52, 0x200000")
    a(f"buffer_load_dwordx4 v[{W2}:{W2+3}], v96, s[36:39], s52 offen")
    a(f"buffer_load_dwordx4 v[{W2+4}:{W2+7}], v96, s[36:39], s52 offen offset:16")
    a("v_lshrrev_b32 v106, 5, v0")
    a("v_lshlrev_b32 v96, 8, v106"); a("v_add_u32 v96, v96, v5"); a("v_lshlrev_b32 v96, 3, v96")
    a("v_lshrrev_b32 v97, 6, v0"); a("v_mul_u32_u24 v97, 5120, v97"); a(f"v_add_u32 v97, {K2_XW}, v97")
    a("v_and_b32 v98, 1, v106"); a("v_mul_u32_u24 v98, 288, v98")
    a("v_add_u32 v99, v98, v5"); a("v_lshlrev_b32 v99, 3, v99"); a("v_add_u32 v99, v99, v97")
    a("v_lshrrev_b32 v100, 2, v5"); a("v_mul_u32_u24 v100, 36, v100")
    a("v_add_u32 v100, v100, v101"); a("v_add_u32 v100, v100, v98"); a("v_lshlrev_b32 v100, 3, v100"); a("v_add_u32 v100, v100, v97")
    a("v_and_b32 v102, 63, v0"); a("v_lshrrev_b32 v102, 2, v102"); a("v_mul_u32_u24 v102, 20, v102")
    a("v_mul_u32_u24 v103, 5, v101"); a("v_add_u32 v103, v103, v102"); a("v_lshlrev_b32 v103, 4, v103"); a("v_add_u32 v103, v103, v97")
    a("v_add_u32 v104, v102, v101"); a("v_lshlrev_b32 v104, 4, v104"); a("v_add_u32 v104, v104, v97")
    stamp(a, 2, "k2")
    a("s_waitcnt vmcnt(12)")
    stamp(a, 3, "k2")
    bfly8(a, A, B, 48)
    for k in range(1, 8): cmul(a, A[k], B[k], TW1[k])
    a(f"ds_write_b64 v3, {P(B[0])} offset:{K2_X1F}")
    for k in range(1, 8): a(f"ds_write_b64 v3, {P(A[k])} offset:{K2_X1F+2048*k}")
    a("s_waitcnt lgkmcnt(0)"); a("s_barrier")
    for n2 in range(8): a(f"ds_read_b64 {P(A[n2])}, v96 offset:{K2_X1F+256*n2}")
    stamp(a, 4, "k2")
    a("s_waitcnt vmcnt(4) lgkmcnt(0)")
    stamp(a, 5, "k2")
    bfly8(a, A, B, 48)
    for k in range(1, 8): cmul(a, A[k], B[k], TW2[k])
    a(f"ds_write_b64 v99, {P(B[0])}")
    for k in range(1, 8): a(f"ds_write_b64 v99, {P(A[k])} offset:{288*k}")
    for n1 in range(8): a(f"ds_read_b64 {P(A[n1])}, v100 offset:{32*n1}")
    a("s_waitcnt lgkmcnt(0)")
    bfly8(a, A, B, 48)
    a(f"v_mov_b32 v{A[0]}, v{B[0]}"); a(f"v_mov_b32 v{A[0]+1}, v{B[0]+1}")
    for k in range(1, 8): cmul(a, A[k], B[k], TW3[k])
    for q in range(4): a(f"ds_write_b128 v103, v[{A[2*q]}:{A[2*q]+3}] offset:{16*q}")
    for n0 in range(4): a(f"ds_read_b128 v[{B[2*n0]}:{B[2*n0]+3}], v104 offset:{80*n0}")
    a("s_waitcnt lgkmcnt(0)")
    E = [B[0], B[2], B[4], B[6]]; O = [B[1], B[3], B[5], B[7]]
    bfly4(a, E, A[0:4]); bfly4(a, O, A[4:8])
    Zr = E + O
    PR = [A[0], A[2], A[4], A[6], A[1], A[3], A[5], A[7]]
    a("s_waitcnt vmcnt(0)")
    a("s_cmp_eq_u32 s14, 0")
    a("s_cbranch_scc1 L_k2_special")
    for r in range(8):
        t = 108 + 2*(r & 1)
        a(f"v_lshlrev_b32 v{t}, 16, v{WW+r}"); a(f"v_and_b32 v{t+1}, 0xffff0000, v{WW+r}")
        cmul(a, PR[r], Zr[r], t)
    a.label("L_k2_back")
    stamp(a, 6, "k2")
    bfly4(a, PR[0:4], B[0:4], inv=True); bfly4(a, PR[4:8], B[4:8], inv=True)
    for n0 in range(4): a(f"ds_write_b128 v104, v[{A[2*n0]}:{A[2*n0]+3}] offset:{80*n0}")
    for q in range(4): a(f"ds_read_b128 v[{B[2*q]}:{B[2*q]+3}], v103 offset:{16*q}")
    a("s_waitcnt lgkmcnt(0)")
    a(f"v_mov_b32 v{A[0]}, v{B[0]}"); a(f"v_mov_b32 v{A[0]+1}, v{B[0]+1}")
    for k in range(1, 8): cmul(a, A[k], B[k], TW3[k], conj=True)
    bfly8(a, A, B, 48, inv=True)
    for n1 in range(8): a(f"ds_write_b64 v100, {P(B[n1])} offset:{32*n1}")
    a(f"ds_read_b64 {P(A[0])}, v99")
    for k in range(1, 8): a(f"ds_read_b64 {P(B[k])}, v99 offset:{288*k}")
    a("s_waitcnt lgkmcnt(0)")
    for k in range(1, 8): cmul(a, A[k], B[k], TW2[k], conj=True)
    bfly8(a, A, B, 48, inv=True)
    for n2 in range(8): a(f"ds_write_b64 v96, {P(B[n2])} offset:{K2_X1I+256*n2}")
    a("s_waitcnt lgkmcnt(0)"); a("s_barrier")
    a(f"ds_read_b64 {P(A[0])}, v3 offset:{K2_X1I}")
    for k in range(1, 8): a(f"ds_read_b64 {P(B[k])}, v3 offset:{K2_X1I+2048*k}")
    a("s_waitcnt lgkmcnt(0)")
    for k in range(1, 8): cmul(a, A[k], B[k], TW1[k], conj=True)
    bfly8(a, A, B, 48, inv=True)
    stamp(a, 7, "k2")
    for j in range(8):
        a(f"buffer_store_dwordx2 {P(B[j])}, v{AV[j//2]}, s[28:31], s50 offen offset:{2048*(j&1)}")
    stamp_flush(a, 8, "k2", 5)
    a("s_endpgm")
    a.label("L_k2_special")
    a("v_lshrrev_b32 v108, 2, v0"); a("v_and_b32 v108, 7, v108"); a("v_lshlrev_b32 v108, 3, v108")
    a("v_add_u32 v108, v108, v106"); a("v_lshlrev_b32 v109, 7, v101"); a("v_add_u32 v108, v108, v109")
    a("s_barrier")
    a("v_lshlrev_b32 v109, 4, v108")
    for r in range(8):
        ko = 64*(r >> 2) + 512*(r & 3)
        a(f"v_mov_b32 v120, v{Zr[r]}"); a(f"v_mov_b32 v121, v{Zr[r]+1}"); a(f"v_mov_b32 v122, v{WW+r}"); a(f"v_mov_b32 v123, v{W2+r}")
        a(f"ds_write_b128 v109, v[120:123] offset:{16*ko}")
    a("s_waitcnt lgkmcnt(0)"); a("s_barrier")
    M = 128
    for r in range(8):
        ko = 64*(r >> 2) + 512*(r & 3)
        a(f"v_sub_u32 v109, {2048-ko}, v108"); a("v_and_b32 v109, 2047, v109"); a("v_lshlrev_b32 v109, 4, v109")
        a(f"ds_read_b128 v[{M+4*r}:{M+4*r+3}], v109")
    a("s_waitcnt lgkmcnt(0)"); a("s_barrier")
    for r in range(8):
        m = M + 4*r
        a(f"v_lshlrev_b32 v108, 16, v{WW+r}"); a(f"v_and_b32 v109, 0xffff0000, v{WW+r}")
        a(f"v_lshlrev_b32 v110, 16, v{W2+r}"); a(f"v_and_b32 v111, 0xffff0000, v{W2+r}")
        a(f"v_lshlrev_b32 v120, 16, v{m+2}"); a(f"v_and_b32 v121, 0xffff0000, v{m+2}")
        a(f"v_lshlrev_b32 v122, 16, v{m+3}"); a(f"v_and_b32 v123, 0xffff0000, v{m+3}")
        a("v_pk_add_f32 v[108:109], v[108:109], v[120:121] neg_hi:[0,1]")
        a("v_pk_add_f32 v[110:111], v[110:111], v[122:123] neg_hi:[0,1]")
        cadd(a, 120, 108, 110); csub(a, 122, 108, 110)
        for q in range(4): a(f"v_mul_f32 v{120+q}, 0.25, v{120+q}")
        cmul(a, PR[r], Zr[r], 120)
        cmul(a, 124, 122, m, conj=True)
        cadd(a, PR[r], PR[r], 124)
    a("s_branch L_k2_back")

RQ = 5152
K3_LDS = 4*RQ
def k3_role(a):
    A = [8+2*i for i in range(8)]; B = [24+2*i for i in range(8)]
    TW1 = [40+2*i for i in range(8)]; TW2 = [56+2*i for i in range(8)]
    Y = 72
    XV = 104; GV = 112
    stamp(a, 0, "k3")
    a("s_load_dwordx2 s[4:5], s[0:1], 0")
    a("s_load_dwordx2 s[6:7], s[0:1], 56")
    a("s_load_dwordx2 s[12:13], s[0:1], 72")
    xcd_pair(a, 14, 2)
    srd_table(a, 20, "L_k3_pc")
    a(f"s_mov_b32 s48, {fhex(R2)}"); a(f"s_mov_b32 s49, {fhex(R2)}")
    a("v_and_b32 v1, 63, v0")
    a("v_lshrrev_b32 v2, 6, v0")
    a("v_readfirstlane_b32 s50, v2")
    a("v_lshrrev_b32 v5, 3, v1"); a("v_and_b32 v6, 7, v1")
    a("v_lshlrev_b32 v3, 4, v1"); a("v_lshlrev_b32 v4, 4, v6")
    load_tw(a, TW2[0], 4, 20, T_R2, 8)
    load_tw(a, TW1[0], 3, 20, T_R1, 64)
    a("s_lshl_b32 s51, s14, 3"); a("s_lshl_b32 s52, s50, 1"); a("s_add_u32 s51, s51, s52")
    a("v_lshrrev_b32 v120, 2, v0"); a("v_and_b32 v121, 3, v0")
    a(f"v_mul_u32_u24 v122, {CSTR}, v120"); a("v_lshlrev_b32 v123, 4, v121"); a("v_add_u32 v122, v122, v123")
    a("s_waitcnt lgkmcnt(0)")
    stamp(a, 1, "k3")
    srd_from_ptr(a, 28, 12, SZ_Y2T, WS_Y2T)
    a("s_lshl_b32 s53, s14, 6")
    for i in range(4):
        a(f"buffer_load_dwordx4 v[{Y+4*i}:{Y+4*i+3}], v122, s[28:31], s53 offen")
        if i < 3: a(f"s_add_u32 s53, s53, {64*CSTR}")
    srd_from_ptr(a, 16, 4, 2048*1024)
    srd_from_ptr(a, 24, 6, 2048*1024)
    srd_from_ptr(a, 32, 12, SZ_G, WS_G)
    a("s_lshl_b32 s55, s51, 10")
    a(f"buffer_load_dwordx4 v[{XV}:{XV+3}], v3, s[16:19], s55 offen")
    a(f"buffer_load_dwordx4 v[{XV+4}:{XV+7}], v3, s[16:19], s55 offen offset:1024")
    a(f"buffer_load_dwordx4 v[{GV}:{GV+3}], v3, s[32:35], s55 offen")
    a(f"buffer_load_dwordx4 v[{GV+4}:{GV+7}], v3, s[32:35], s55 offen offset:1024")
    a("v_lshrrev_b32 v123, 3, v120"); a("v_add_u32 v123, v123, v120"); a("v_lshlrev_b32 v123, 4, v123")
    a(f"v_mul_u32_u24 v124, {RQ}, v121"); a("v_add_u32 v123, v123, v124")
    a(f"s_mul_i32 s61, s50, {RQ}")
    a("v_mul_u32_u24 v124, 9, v6"); a("v_add_u32 v125, v124, v5"); a("v_lshlrev_b32 v125, 4, v125"); a("v_add_u32 v125, s61, v125")
    a("v_lshlrev_b32 v7, 3, v6"); a("v_add_u32 v7, v7, v5")
    a("v_sub_u32 v126, 64, v7"); a("v_lshrrev_b32 v127, 3, v126"); a("v_add_u32 v126, v126, v127"); a("v_lshlrev_b32 v126, 4, v126"); a("v_add_u32 v126, s61, v126")
    a("v_sub_u32 v127, 256, v7"); a("v_and_b32 v127, 255, v127"); a("v_lshrrev_b32 v128, 3, v127"); a("v_add_u32 v127, v127, v128"); a("v_lshlrev_b32 v127, 4, v127"); a("v_add_u32 v127, s61, v127")
    a("v_lshlrev_b32 v129, 3, v1"); a("v_add_u32 v129, s61, v129")
    a("v_mul_u32_u24 v130, 72, v5"); a("v_add_u32 v131, v130, v6"); a("v_lshlrev_b32 v131, 3, v131"); a("v_add_u32 v131, s61, v131")
    a("v_add_u32 v132, v124, v130"); a("v_lshlrev_b32 v132, 3, v132"); a("v_add_u32 v132, s61, v132")
    a("v_lshlrev_b32 v133, 4, v5"); a("v_add_u32 v133, v133, v129")
    a("v_mul_u32_u24 v134, 80, v1"); a("v_add_u32 v134, s61, v134")
    stamp(a, 2, "k3")
    a("s_waitcnt vmcnt(4)")
    stamp(a, 3, "k3")
    for i in range(4): a(f"ds_write_b128 v123, v[{Y+4*i}:{Y+4*i+3}] offset:{72*16*i}")
    a("s_waitcnt lgkmcnt(0)"); a("s_barrier")
    for k2 in range(4): a(f"ds_read_b128 v[{Y+4*k2}:{Y+4*k2+3}], v125 offset:{72*16*k2}")
    a(f"ds_read_b128 v[{Y+16}:{Y+19}], v127")
    for k2 in range(5, 8): a(f"ds_read_b128 v[{Y+4*k2}:{Y+4*k2+3}], v126 offset:{72*16*(7-k2)}")
    a("s_waitcnt lgkmcnt(0)")
    stamp(a, 4, "k3")
    for k2 in range(4):
        y = Y + 4*k2
        cadd_pi(a, A[k2], y, y+2)
    for k2 in range(4, 8):
        y = Y + 4*k2
        a(f"v_pk_add_f32 {P(A[k2])}, {P(y)}, {P(y+2)} op_sel:[0,1] op_sel_hi:[1,0] neg_hi:[1,0]")
    a("v_cmp_eq_u32 vcc, 0, v1")
    a(f"v_cndmask_b32 v{A[0]}, v{A[0]}, v{Y}, vcc"); a(f"v_cndmask_b32 v{A[0]+1}, v{A[0]+1}, v{Y+2}, vcc")
    a(f"v_cndmask_b32 v{A[4]}, v{A[4]}, v{Y+17}, vcc"); a(f"v_cndmask_b32 v{A[4]+1}, v{A[4]+1}, v{Y+19}, vcc")
    bfly8(a, A, B, 48, inv=True)
    for n0 in range(8): a(f"ds_write_b64 v132, {P(B[n0])} offset:{8*n0}")
    a(f"ds_read_b64 {P(A[0])}, v131")
    for k in range(1, 8): a(f"ds_read_b64 {P(B[k])}, v131 offset:{72*k}")
    a("s_waitcnt lgkmcnt(0)")
    for k in range(1, 8): cmul(a, A[k], B[k], TW2[k], conj=True)
    bfly8(a, A, B, 48, inv=True)
    for n1 in range(8): a(f"ds_write_b64 v131, {P(B[n1])} offset:{64*n1}")
    a(f"ds_read_b64 {P(A[0])}, v129")
    for k in range(1, 8): a(f"ds_read_b64 {P(B[k])}, v129 offset:{576*k}")
    a("s_waitcnt lgkmcnt(0)")
    for k in range(1, 8): cmul(a, A[k], B[k], TW1[k], conj=True)
    bfly8(a, A, B, 48, inv=True)
    for j in range(8): a(f"ds_write_b64 v133, {P(B[j])} offset:{640*j}")
    for q in range(4): a(f"ds_read_b128 v[{A[2*q]}:{A[2*q]+3}], v134 offset:{16*q}")
    sc = 1.0/(2*2048*512)
    a(f"s_mov_b32 s46, {fhex(sc)}"); a(f"s_mov_b32 s47, {fhex(sc)}")
    a("s_waitcnt vmcnt(0) lgkmcnt(0)")
    stamp(a, 5, "k3")
    for e in range(8): a(f"v_pk_mul_f32 {P(A[e])}, {P(A[e])}, s[46:47]")
    OUT = 120
    for row in range(2):
        for q in range(4):
            e0, e1 = A[2*q]+row, A[2*q+1]+row
            t = 40 + 8*(q & 1)
            a(f"v_cvt_pk_bf16_f32 v{t}, v{e0}, v{e1}")
            a(f"v_lshlrev_b32 v{t+2}, 16, v{t}"); a(f"v_and_b32 v{t+3}, 0xffff0000, v{t}")
            g = GV + 4*row + q; x = XV + 4*row + q
            a(f"v_lshlrev_b32 v{t+4}, 16, v{g}"); a(f"v_and_b32 v{t+5}, 0xffff0000, v{g}")
            a(f"v_pk_mul_f32 {P(t+2)}, {P(t+2)}, {P(t+4)}")
            a(f"v_cvt_pk_bf16_f32 v{t}, v{t+2}, v{t+3}")
            a(f"v_lshlrev_b32 v{t+2}, 16, v{t}"); a(f"v_and_b32 v{t+3}, 0xffff0000, v{t}")
            a(f"v_lshlrev_b32 v{t+4}, 16, v{x}"); a(f"v_and_b32 v{t+5}, 0xffff0000, v{x}")
            a(f"v_pk_add_f32 {P(t+2)}, {P(t+2)}, {P(t+4)}")
            a(f"v_cvt_pk_bf16_f32 v{OUT+4*row+q}, v{t+2}, v{t+3}")
    stamp(a, 6, "k3")
    a(f"buffer_store_dwordx4 v[{OUT}:{OUT+3}], v3, s[24:27], s55 offen")
    a(f"buffer_store_dwordx4 v[{OUT+4}:{OUT+7}], v3, s[24:27], s55 offen offset:1024")
    stamp_flush(a, 7, "k3", 5)
    a("s_endpgm")
```

```python
from gen_common import *
K2G_RED = 0; K2G_TILE = 49152; K2_GEMM_LDS = K2G_TILE + 64*144
PD = 6
NS = 22
K2_VGPR = 176

def k2_gemm_role(a):
    ACC = 8
    FB = 72
    stamp(a, 0, "k2g")
    a("s_load_dwordx2 s[12:13], s[0:1], 72")
    a("v_and_b32 v1, 63, v0"); a("v_lshrrev_b32 v2, 6, v0"); a("v_readfirstlane_b32 s50, v2")
    a("v_lshlrev_b32 v3, 4, v1")
    a("s_and_b32 s51, s2, 7"); a("s_lshl_b32 s51, s51, 2"); a("s_lshr_b32 s3, s2, 3"); a("s_and_b32 s3, s3, 3"); a("s_add_u32 s51, s51, s3")
    a("s_lshr_b32 s52, s2, 5")
    a("s_mul_i32 s53, s50, 22")
    a("s_lshl_b32 s54, s53, 14"); a("s_lshl_b32 s3, s52, 11"); a("s_add_u32 s54, s54, s3")
    a("s_lshl_b32 s55, s53, 16"); a("s_lshl_b32 s3, s51, 11"); a("s_add_u32 s55, s55, s3")
    for i in range(64): a(f"v_mov_b32 v{ACC+i}, 0")
    a("s_waitcnt lgkmcnt(0)")
    srd_from_ptr(a, 20, 12, SZ_WD, WS_WD)
    srd_from_ptr(a, 24, 12, SZ_H, WS_H)
    srd_from_ptr(a, 28, 12, SZ_G, WS_G)
    def loads(s):
        b = FB + 16*(s % PD)
        L = [f"buffer_load_dwordx4 v[{b}:{b+3}], v3, s[20:23], s54 offen",
             f"buffer_load_dwordx4 v[{b+8}:{b+11}], v3, s[24:27], s55 offen",
             f"buffer_load_dwordx4 v[{b+4}:{b+7}], v3, s[20:23], s54 offen offset:1024",
             f"buffer_load_dwordx4 v[{b+12}:{b+15}], v3, s[24:27], s55 offen offset:1024",
             "s_add_u32 s54, s54, 0x4000", "s_add_u32 s55, s55, 0x10000"]
        return L
    for s in range(PD):
        for t in loads(s): a(t)
    stamp(a, 1, "k2g")
    for s in range(NS):
        b = FB + 16*(s % PD)
        later = min(NS-1, s+PD-1) - s
        a(f"s_waitcnt vmcnt({4*later+2})")
        a(f"v_mfma_f32_32x32x16_bf16 v[{ACC}:{ACC+15}], v[{b}:{b+3}], v[{b+8}:{b+11}], v[{ACC}:{ACC+15}]")
        a(f"s_waitcnt vmcnt({4*later})")
        a(f"v_mfma_f32_32x32x16_bf16 v[{ACC+32}:{ACC+47}], v[{b+4}:{b+7}], v[{b+8}:{b+11}], v[{ACC+32}:{ACC+47}]")
        a(f"v_mfma_f32_32x32x16_bf16 v[{ACC+16}:{ACC+31}], v[{b}:{b+3}], v[{b+12}:{b+15}], v[{ACC+16}:{ACC+31}]")
        a(f"v_mfma_f32_32x32x16_bf16 v[{ACC+48}:{ACC+63}], v[{b+4}:{b+7}], v[{b+12}:{b+15}], v[{ACC+48}:{ACC+63}]")
        if s + PD < NS:
            for t in loads(s+PD): a(t)
    stamp(a, 2, "k2g")
    for q in range(4):
        a(f"s_sub_u32 s56, s50, {q+1}"); a("s_and_b32 s56, s56, 3"); a("s_lshl_b32 s56, s56, 12"); a(f"s_add_u32 s56, s56, {q*12288}")
        a("v_add_u32 v4, s56, v3")
        a(f"s_cmp_eq_u32 s50, {q}"); a(f"s_cbranch_scc1 L_k2g_own{q}")
        for i in range(4): a(f"ds_write_b128 v4, v[{ACC+16*q+4*i}:{ACC+16*q+4*i+3}] offset:{1024*i}")
        a(f"s_branch L_k2g_nx{q}")
        a.label(f"L_k2g_own{q}")
        for i in range(16): a(f"v_mov_b32 v{FB+i}, v{ACC+16*q+i}")
        a.label(f"L_k2g_nx{q}")
    a("s_waitcnt lgkmcnt(0)"); a("s_barrier")
    a("s_mul_i32 s56, s50, 12288"); a("v_add_u32 v4, s56, v3")
    for i in range(12): a(f"ds_read_b128 v[{ACC+4*i}:{ACC+4*i+3}], v4 offset:{1024*i}")
    a("v_and_b32 v5, 31, v1"); a("v_lshrrev_b32 v6, 5, v1")
    a("s_and_b32 s56, s50, 1"); a("s_lshl_b32 s56, s56, 5"); a("v_add_u32 v5, s56, v5"); a("v_mul_u32_u24 v5, 144, v5")
    a("s_lshr_b32 s56, s50, 1"); a("s_lshl_b32 s56, s56, 6"); a(f"s_add_u32 s56, s56, {K2G_TILE}")
    a("v_lshl_add_u32 v5, v6, 3, v5"); a("v_add_u32 v5, s56, v5")
    a("s_waitcnt lgkmcnt(0)")
    for i in range(16):
        a(f"v_add_f32 v{FB+i}, v{FB+i}, v{ACC+i}"); a(f"v_add_f32 v{ACC+16+i}, v{ACC+16+i}, v{ACC+32+i}")
    for i in range(16): a(f"v_add_f32 v{FB+i}, v{FB+i}, v{ACC+16+i}")
    NL2E = -math.log2(math.e)
    for i in range(0, 16, 2):
        y = FB + i; t = ACC + 2*i
        a(f"v_cvt_pk_bf16_f32 v{t}, v{y}, v{y+1}")
        a(f"v_lshlrev_b32 v{y}, 16, v{t}"); a(f"v_and_b32 v{y+1}, 0xffff0000, v{t}")
        a(f"v_mul_f32 v{t}, {fhex(NL2E)}, v{y}"); a(f"v_mul_f32 v{t+1}, {fhex(NL2E)}, v{y+1}")
        a(f"v_exp_f32 v{t}, v{t}"); a(f"v_exp_f32 v{t+1}, v{t+1}")
    for i in range(0, 16, 2):
        t = ACC + 2*i
        a(f"v_add_f32 v{t}, 1.0, v{t}"); a(f"v_add_f32 v{t+1}, 1.0, v{t+1}")
        a(f"v_rcp_f32 v{t}, v{t}"); a(f"v_rcp_f32 v{t+1}, v{t+1}")
    for i in range(0, 16, 2):
        y = FB + i; t = ACC + 2*i
        a(f"v_mul_f32 v{y}, v{y}, v{t}"); a(f"v_mul_f32 v{y+1}, v{y+1}, v{t+1}")
        a(f"v_cvt_pk_bf16_f32 v{FB+16+i//2}, v{y}, v{y+1}")
    for q in range(4): a(f"ds_write_b64 v5, v[{FB+16+2*q}:{FB+17+2*q}] offset:{16*q}")
    a("v_lshrrev_b32 v5, 3, v0"); a("v_and_b32 v6, 7, v0"); a("v_lshlrev_b32 v6, 4, v6")
    a("v_mul_u32_u24 v7, 144, v5"); a("v_add_u32 v7, v7, v6")
    a("v_lshl_add_u32 v5, v5, 10, v6")
    a("s_lshl_b32 s56, s51, 16"); a("s_lshl_b32 s3, s52, 7"); a("s_add_u32 s56, s56, s3"); a("s_add_u32 s57, s56, 0x8000")
    a("s_waitcnt lgkmcnt(0)"); a("s_barrier")
    a(f"ds_read_b128 v[8:11], v7 offset:{K2G_TILE}"); a(f"ds_read_b128 v[12:15], v7 offset:{K2G_TILE+32*144}")
    a("s_waitcnt lgkmcnt(0)")
    stamp(a, 3, "k2g")
    a("buffer_store_dwordx4 v[8:11], v5, s[28:31], s56 offen")
    a("buffer_store_dwordx4 v[12:15], v5, s[28:31], s57 offen")
    stamp_flush(a, 4, "k2g", 5)
    a("s_endpgm")
```

```python
import sys, os, re
from gen_k1b import *
from gen_k23 import *
from gen_k2g import *

HDR = open("cdna_kernels/" + KN + ".s.ref").read().split("; Override launch geometry")[0]

def kstart(a, name):
    a.raw(f".globl {name}\n.p2align 8\n.type {name},@function")
    a.label(name)

def build():
    a = Asm()
    k1, k2, k3 = "k1_kernel", "k2_kernel", "k3_kernel"
    lds2 = max(K2_COL_LDS, K2_GEMM_LDS)
    a.raw(HDR + f"; @launch kernel={k1} grid=(256,1,1) block=(512,1,1) lds={K1_LDS}\n"
              + f"; @launch kernel={k2} grid=(512,1,1) block=(256,1,1) lds={lds2}\n"
              + f"; @launch kernel={k3} grid=(256,1,1) block=(256,1,1) lds={K3_LDS}\n"
              + '.amdgcn_target "amdgcn-amd-amdhsa--gfx950"\n.text')
    kstart(a, k1)
    a("s_cmp_ge_u32 s2, 256"); a("s_cbranch_scc1 L_k1_exit")
    k1_kernel(a)
    a.label("L_k1_exit")
    a("s_endpgm")
    kstart(a, k2)
    a("s_cmp_ge_u32 s2, 512"); a("s_cbranch_scc1 L_k2_exit")
    a("s_cmp_ge_u32 s2, 256"); a("s_cbranch_scc1 L_k2_gemm")
    k2_col_role(a)
    a.label("L_k2_gemm")
    a("s_sub_u32 s2, s2, 256")
    k2_gemm_role(a)
    a.label("L_k2_exit")
    a("s_endpgm")
    kstart(a, k3)
    a("s_cmp_ge_u32 s2, 256"); a("s_cbranch_scc1 L_k3_exit")
    k3_role(a)
    a.label("L_k3_exit")
    a("s_endpgm")
    txt = a.render()
    if os.environ.get("WT", "1") == "1":
        txt = re.sub(r"(buffer_store_dword\S* .*offen.*)", r"\1 sc0 sc1", txt)
    txt += twiddle_table()
    txt += '.section .rodata,"a"\n'
    for nm, vg in ((k1, K1_VGPR), (k2, K2_VGPR), (k3, 136)):
        txt += ".p2align 6\n" + kernel_desc(nm, vg)
    return txt

if __name__ == "__main__":
    out = sys.argv[1] if len(sys.argv) > 1 else "cdna_kernels/" + KN + ".s"
    open(out, "w").write(build())
```

```python
import re
s = open("v3.s").read()
pat = "k3_kernel:\n    s_cmp_ge_u32 s2, 256\n    s_cbranch_scc1 L_k3_exit\n"
assert pat in s
A = s.replace(pat, pat + """    s_getreg_b32 s90, hwreg(HW_REG_XCC_ID)
    s_and_b32 s90, s90, 7
    s_and_b32 s91, s2, 7
    s_cmp_eq_u32 s90, s91
    s_cbranch_scc1 L_diag_skip
""" + "    s_sleep 127\n"*8 + "L_diag_skip:\n")
open("diagA.s", "w").write(A)
pat = "k1_kernel:\n    s_cmp_ge_u32 s2, 256\n    s_cbranch_scc1 L_k1_exit\n"
assert pat in s
B = s.replace(pat, pat + """    s_load_dwordx2 s[90:91], s[0:1], 32
    s_waitcnt lgkmcnt(0)
    s_memtime s[92:93]
    s_waitcnt lgkmcnt(0)
    s_load_dword s94, s[90:91], 0x10000
    s_waitcnt lgkmcnt(0)
    s_memtime s[94:95]
    s_waitcnt lgkmcnt(0)
    s_sub_u32 s96, s94, s92
    s_mul_i32 s96, s96, 30
""")
i = B.index("L_k1_kh0:")
j = B.index("    s_endpgm", i)
B = B[:j] + """    s_cmp_eq_u32 s2, 5
    s_cbranch_scc0 L_diag_end
    s_memtime s[92:93]
    s_waitcnt lgkmcnt(0)
L_diag_loop:
    s_sleep 8
    s_memtime s[94:95]
    s_waitcnt lgkmcnt(0)
    s_sub_u32 s97, s94, s92
    s_cmp_lt_u32 s97, s96
    s_cbranch_scc1 L_diag_loop
L_diag_end:
""" + B[j:]
open("diagB.s", "w").write(B)
```

```python
import math, struct
from asmgen import *

KN = "recurrent_scan__spectral_gfnet__glu_gated_geglu__prompt"

CSTR = 16384 + 256
RS = 16384 + 256
WS_Y1T = 0x000000; SZ_Y1T = 256*RS
WS_Y2T = 0x500000; SZ_Y2T = 256*CSTR
WS_H   = 0xA00000; SZ_H = 86*64*1024
WS_WD  = 0x1000000; SZ_WD = 86*16*1024
WS_WT  = 0x1200000; SZ_WT = 257*2048*4
WS_G   = 0x1500000; SZ_G = 2048*512*2

def f2u(x): return struct.unpack("<I", struct.pack("<f", x))[0]
def fhex(x): return "0x%08x" % f2u(x)

def srd_from_ptr(a, sd, sp, nbytes, off=0):
    if off:
        a(f"s_add_u32 s{sd}, s{sp}, 0x{off:x}")
        a(f"s_addc_u32 s{sd+1}, s{sp+1}, 0")
        a(f"s_and_b32 s{sd+1}, s{sd+1}, 0xffff")
    else:
        a(f"s_mov_b32 s{sd}, s{sp}")
        a(f"s_and_b32 s{sd+1}, s{sp+1}, 0xffff")
    a(f"s_mov_b32 s{sd+2}, 0x{nbytes:x}")
    a(f"s_mov_b32 s{sd+3}, 0x00020000")

def srd_table(a, sd, lbl):
    a(f"s_getpc_b64 s[{sd}:{sd+1}]")
    a.raw(f"{lbl}:")
    a(f"s_add_u32 s{sd}, s{sd}, TWTAB-{lbl}")
    a(f"s_addc_u32 s{sd+1}, s{sd+1}, 0")
    a(f"s_and_b32 s{sd+1}, s{sd+1}, 0xffff")
    a(f"s_mov_b32 s{sd+2}, {TAB_SIZE}")
    a(f"s_mov_b32 s{sd+3}, 0x00020000")

def P(i): return f"v[{i}:{i+1}]"

NPK = [False]
def cadd(a, d, x, y):
    if NPK[0]:
        a(f"v_add_f32 v{d}, v{x}, v{y}"); a(f"v_add_f32 v{d+1}, v{x+1}, v{y+1}")
    else: a(f"v_pk_add_f32 {P(d)}, {P(x)}, {P(y)}")
def csub(a, d, x, y):
    if NPK[0]:
        a(f"v_sub_f32 v{d}, v{x}, v{y}"); a(f"v_sub_f32 v{d+1}, v{x+1}, v{y+1}")
    else: a(f"v_pk_add_f32 {P(d)}, {P(x)}, {P(y)} neg_lo:[0,1] neg_hi:[0,1]")
def cadd_mi(a, d, x, y):
    if NPK[0]:
        assert d != y
        a(f"v_add_f32 v{d}, v{x}, v{y+1}"); a(f"v_sub_f32 v{d+1}, v{x+1}, v{y}")
    else: a(f"v_pk_add_f32 {P(d)}, {P(x)}, {P(y)} op_sel:[0,1] op_sel_hi:[1,0] neg_hi:[0,1]")
def cadd_pi(a, d, x, y):
    if NPK[0]:
        assert d != y
        a(f"v_sub_f32 v{d}, v{x}, v{y+1}"); a(f"v_add_f32 v{d+1}, v{x+1}, v{y}")
    else: a(f"v_pk_add_f32 {P(d)}, {P(x)}, {P(y)} op_sel:[0,1] op_sel_hi:[1,0] neg_lo:[0,1]")
def cmul(a, d, x, w, conj=False):
    assert d != x
    if NPK[0]:
        a(f"v_mul_f32 v{d}, v{x}, v{w}"); a(f"v_mul_f32 v{d+1}, v{x+1}, v{w}")
        if not conj:
            a(f"v_fma_f32 v{d}, -v{x+1}, v{w+1}, v{d}"); a(f"v_fmac_f32 v{d+1}, v{x}, v{w+1}")
        else:
            a(f"v_fmac_f32 v{d}, v{x+1}, v{w+1}"); a(f"v_fma_f32 v{d+1}, -v{x}, v{w+1}, v{d+1}")
        return
    a(f"v_pk_mul_f32 {P(d)}, {P(x)}, {P(w)} op_sel:[0,0] op_sel_hi:[1,0]")
    if not conj:
        a(f"v_pk_fma_f32 {P(d)}, {P(x)}, {P(w)}, {P(d)} op_sel:[1,1,0] op_sel_hi:[0,1,1] neg_lo:[1,0,0]")
    else:
        a(f"v_pk_fma_f32 {P(d)}, {P(x)}, {P(w)}, {P(d)} op_sel:[1,1,0] op_sel_hi:[0,1,1] neg_hi:[1,0,0]")
def cscale(a, d, x, sR, neg=False):
    if NPK[0]:
        if neg:
            a(f"v_mul_f32 v{d}, -v{x}, s{sR}"); a(f"v_mul_f32 v{d+1}, -v{x+1}, s{sR}")
        else:
            a(f"v_mul_f32 v{d}, s{sR}, v{x}"); a(f"v_mul_f32 v{d+1}, s{sR}, v{x+1}")
    else:
        a(f"v_pk_mul_f32 {P(d)}, {P(x)}, s[{sR}:{sR+1}]" + (" neg_lo:[1,0] neg_hi:[1,0]" if neg else ""))

def bfly8(a, A, B, sR, inv=False):
    mi = cadd_pi if inv else cadd_mi
    pi_ = cadd_mi if inv else cadd_pi
    for j in range(4):
        cadd(a, B[j], A[j], A[j+4])
        csub(a, B[j+4], A[j], A[j+4])
    mi(a, A[0], B[5], B[5])
    cscale(a, B[5], A[0], sR)
    pi_(a, A[1], B[7], B[7])
    cscale(a, B[7], A[1], sR, neg=True)
    cadd(a, A[0], B[0], B[2]); csub(a, A[1], B[0], B[2])
    cadd(a, A[2], B[1], B[3]); csub(a, A[3], B[1], B[3])
    mi(a, A[4], B[4], B[6]); pi_(a, A[5], B[4], B[6])
    cadd(a, A[6], B[5], B[7]); csub(a, A[7], B[5], B[7])
    cadd(a, B[0], A[0], A[2]); csub(a, B[4], A[0], A[2])
    mi(a, B[2], A[1], A[3]); pi_(a, B[6], A[1], A[3])
    cadd(a, B[1], A[4], A[6]); csub(a, B[5], A[4], A[6])
    mi(a, B[3], A[5], A[7]); pi_(a, B[7], A[5], A[7])

def bfly4(a, A, B, inv=False):
    mi = cadd_pi if inv else cadd_mi
    pi_ = cadd_mi if inv else cadd_pi
    cadd(a, B[0], A[0], A[2]); csub(a, B[1], A[0], A[2])
    cadd(a, B[2], A[1], A[3]); csub(a, B[3], A[1], A[3])
    cadd(a, A[0], B[0], B[2]); csub(a, A[2], B[0], B[2])
    mi(a, A[1], B[1], B[3]); pi_(a, A[3], B[1], B[3])

def wave_sum(a, r, sdst):
    for sh in (1, 2, 4, 8):
        a(f"v_add_f32_dpp v{r}, v{r}, v{r} row_shr:{sh} row_mask:0xf bank_mask:0xf bound_ctrl:0")
    a(f"v_add_f32_dpp v{r}, v{r}, v{r} row_bcast:15 row_mask:0xa bank_mask:0xf")
    a(f"v_add_f32_dpp v{r}, v{r}, v{r} row_bcast:31 row_mask:0xc bank_mask:0xf")
    a(f"v_readlane_b32 s{sdst}, v{r}, 63")

T_R1 = 0; T_R2 = 4096; T_C1 = 4608; T_C2 = 20992; T_C3 = 23040; TAB_SIZE = 23296
def twiddle_table():
    out = [".p2align 8", ".type TWTAB,@object", "TWTAB:"]
    def w(N, j):
        th = 2*math.pi*(j % N)/N
        return f"{fhex(math.cos(th))}, {fhex(-math.sin(th))}"
    for (N, cnt) in ((512, 64), (64, 8), (2048, 256), (256, 32), (32, 4)):
        for q in range(4):
            for l in range(cnt):
                out.append(f".long {w(N, l*2*q)}, {w(N, l*(2*q+1))}")
    out.append(f".size TWTAB, {TAB_SIZE}")
    return "\n".join(out) + "\n"

def load_tw(a, dst, vaddr, srd, base, cnt):
    for q in range(4):
        off = base + q*cnt*16
        if off < 4096:
            a(f"buffer_load_dwordx4 v[{dst+4*q}:{dst+4*q+3}], v{vaddr}, s[{srd}:{srd+3}], 0 offen offset:{off}")
        else:
            a(f"s_mov_b32 s3, {off}")
            a(f"buffer_load_dwordx4 v[{dst+4*q}:{dst+4*q+3}], v{vaddr}, s[{srd}:{srd+3}], s3 offen")

def kernel_desc(name, vgpr, sgpr=102):
    acc = (vgpr + 3)//4*4
    return f""".amdhsa_kernel {name}
  .amdhsa_next_free_vgpr {vgpr}
  .amdhsa_next_free_sgpr {sgpr}
  .amdhsa_accum_offset {acc}
  .amdhsa_group_segment_fixed_size 0
  .amdhsa_kernarg_size 80
  .amdhsa_user_sgpr_count 2
  .amdhsa_user_sgpr_kernarg_segment_ptr 1
  .amdhsa_system_sgpr_workgroup_id_x 1
.end_amdhsa_kernel
"""

def kcol(t, r):
    k0 = t >> 5; k1 = (t >> 2) & 7; k2h = t & 3
    k2l = r >> 2; k3 = r & 3
    return k0 + 8*k1 + 64*(2*k2h + k2l) + 512*k3

import os
STAMP = os.environ.get("STAMP", "")
def stamp(a, i, kern):
    if STAMP == kern: a(f"s_memtime s[{80+2*i}:{81+2*i}]")
_sfc = [0]
def stamp_flush(a, n, kern, wg):
    if STAMP != kern: return
    a("s_waitcnt vmcnt(0) lgkmcnt(0)")
    a(f"s_memtime s[{80+2*n}:{81+2*n}]")
    a("s_load_dwordx2 s[76:77], s[0:1], 64")
    a("s_waitcnt lgkmcnt(0)")
    a(f"s_cmp_eq_u32 s2, {wg}")
    _sfc[0] += 1
    a(f"s_cbranch_scc0 L_nostamp_{kern}{_sfc[0]}")
    srd_from_ptr(a, 76, 76, 512)
    a("v_lshrrev_b32 v1, 6, v0"); a("v_and_b32 v1, 7, v1"); a("v_lshlrev_b32 v1, 6, v1")
    for i in range(n+1):
        a(f"s_sub_u32 s3, s{80+2*i}, s80")
        a("v_mov_b32 v2, s3")
        a(f"buffer_store_dword v2, v1, s[76:79], 0 offen offset:{4*i}")
    a.label(f"L_nostamp_{kern}{_sfc[0]}")
```

```python
from gen_common import *
R2 = 1.0/math.sqrt(2.0)

WS_S = WS_G; SZ_S = SZ_G
WS_XN = 0x1700000; SZ_XN = 2048*1024
WS_FLAG = 0x1900000; SZ_FLAG = 4096

FREG = 4928
L0_FFT = 0
L0_WJ = 4*FREG
L0_XN = L0_WJ + 64*144
K0_LDS = L0_XN + 8*1040
K0_VGPR = 96

def rowgroup_map(a, dst, src):
    a(f"s_and_b32 s{dst}, s{src}, 3"); a(f"s_lshl_b32 s{dst}, s{dst}, 6")
    a(f"s_and_b32 s3, s{src}, 4"); a("s_lshl_b32 s3, s3, 3"); a(f"s_or_b32 s{dst}, s{dst}, s3")
    a(f"s_lshr_b32 s3, s{src}, 3"); a("s_and_b32 s3, s3, 31"); a(f"s_or_b32 s{dst}, s{dst}, s3")

def wave_sum4(a, regs, sdst):
    for sh in (1, 2, 4, 8):
        for r in regs: a(f"v_add_f32_dpp v{r}, v{r}, v{r} row_shr:{sh} row_mask:0xf bank_mask:0xf bound_ctrl:0")
    for r in regs: a(f"v_add_f32_dpp v{r}, v{r}, v{r} row_bcast:15 row_mask:0xa bank_mask:0xf")
    for r in regs: a(f"v_add_f32_dpp v{r}, v{r}, v{r} row_bcast:31 row_mask:0xc bank_mask:0xf")
    for i, r in enumerate(regs): a(f"v_readlane_b32 s{sdst+i}, v{r}, 63")

def ln_two_rows_xn(a, A, T, sT, vxn):
    t0, t1, M, Rv, t2, t3 = T, T+2, T+4, T+6, T+8, T+10
    cadd(a, t0, A[0], A[1]); a(f"v_pk_mul_f32 {P(t1)}, {P(A[0])}, {P(A[0])}")
    cadd(a, t2, A[2], A[3]); a(f"v_pk_mul_f32 {P(t3)}, {P(A[1])}, {P(A[1])}")
    cadd(a, t0, t0, A[4]); a(f"v_pk_fma_f32 {P(t1)}, {P(A[2])}, {P(A[2])}, {P(t1)}")
    cadd(a, t2, t2, A[5]); a(f"v_pk_fma_f32 {P(t3)}, {P(A[3])}, {P(A[3])}, {P(t3)}")
    cadd(a, t0, t0, A[6]); a(f"v_pk_fma_f32 {P(t1)}, {P(A[4])}, {P(A[4])}, {P(t1)}")
    cadd(a, t2, t2, A[7]); a(f"v_pk_fma_f32 {P(t3)}, {P(A[5])}, {P(A[5])}, {P(t3)}")
    a(f"v_pk_fma_f32 {P(t1)}, {P(A[6])}, {P(A[6])}, {P(t1)}")
    a(f"v_pk_fma_f32 {P(t3)}, {P(A[7])}, {P(A[7])}, {P(t3)}")
    cadd(a, t0, t0, t2); cadd(a, t1, t1, t3)
    wave_sum4(a, [t0, t0+1, t1, t1+1], sT)
    a(f"v_mov_b32 v{M}, s{sT}"); a(f"v_mov_b32 v{M+1}, s{sT+1}")
    a(f"v_mov_b32 v{Rv}, s{sT+2}"); a(f"v_mov_b32 v{Rv+1}, s{sT+3}")
    a(f"v_mul_f32 v{M}, {fhex(1/512)}, v{M}"); a(f"v_mul_f32 v{M+1}, {fhex(1/512)}, v{M+1}")
    a(f"v_mul_f32 v{Rv}, {fhex(1/512)}, v{Rv}"); a(f"v_mul_f32 v{Rv+1}, {fhex(1/512)}, v{Rv+1}")
    a(f"v_fma_f32 v{Rv}, -v{M}, v{M}, v{Rv}"); a(f"v_fma_f32 v{Rv+1}, -v{M+1}, v{M+1}, v{Rv+1}")
    a(f"v_max_f32 v{Rv}, 0, v{Rv}"); a(f"v_max_f32 v{Rv+1}, 0, v{Rv+1}")
    def rnd(p, t):
        a(f"v_cvt_pk_bf16_f32 v{t}, v{p}, v{p+1}")
        a(f"v_lshlrev_b32 v{p}, 16, v{t}")
        a(f"v_and_b32 v{p+1}, 0xffff0000, v{t}")
    rnd(M, t0)
    rnd(Rv, t1)
    a(f"v_add_f32 v{Rv}, {fhex(1e-5)}, v{Rv}"); a(f"v_add_f32 v{Rv+1}, {fhex(1e-5)}, v{Rv+1}")
    for j in range(0, 4): csub(a, A[j], A[j], M)
    rnd(Rv, t1)
    a(f"v_sqrt_f32 v{Rv}, v{Rv}"); a(f"v_sqrt_f32 v{Rv+1}, v{Rv+1}")
    for j in range(4, 8): csub(a, A[j], A[j], M)
    rnd(Rv, t1)
    a(f"v_rcp_f32 v{Rv}, v{Rv}"); a(f"v_rcp_f32 v{Rv+1}, v{Rv+1}")
    tt = [t0, t0+1, t2, t2+1, t3, t3+1, M, M+1]
    for j in range(8): a(f"v_cvt_pk_bf16_f32 v{tt[j]}, v{A[j]}, v{A[j]+1}")
    for j in range(8):
        a(f"v_lshlrev_b32 v{A[j]}, 16, v{tt[j]}"); a(f"v_and_b32 v{A[j]+1}, 0xffff0000, v{tt[j]}")
    for j in range(8): a(f"v_pk_mul_f32 {P(A[j])}, {P(A[j])}, {P(Rv)}")
    for j in range(8): a(f"v_cvt_pk_bf16_f32 v{tt[j]}, v{A[j]}, v{A[j]+1}")
    for j in range(8):
        a(f"v_lshlrev_b32 v{A[j]}, 16, v{tt[j]}"); a(f"v_and_b32 v{A[j]+1}, 0xffff0000, v{tt[j]}")
        a(f"ds_write_b16 v{vxn}, v{tt[j]} offset:{128*j}")
        a(f"ds_write_b16_d16_hi v{vxn}, v{tt[j]} offset:{128*j+1040}")

def k0_fft(a):
    A = [8+2*i for i in range(8)]; B = [24+2*i for i in range(8)]
    TW1 = [40+2*i for i in range(8)]; TW2 = [56+2*i for i in range(8)]
    T = 72
    a("s_lshl_b32 s62, s49, 3"); a("s_lshl_b32 s3, s50, 1"); a("s_add_u32 s62, s62, s3")
    a("s_lshl_b32 s62, s62, 10")
    a("v_lshlrev_b32 v5, 1, v1")
    a("v_and_b32 v4, 7, v1"); a("v_lshlrev_b32 v4, 4, v4")
    a("s_waitcnt lgkmcnt(0)")
    srd_from_ptr(a, 20, 4, 2048*1024)
    for j in range(8):
        a(f"buffer_load_ushort v{A[j]}, v5, s[20:23], s62 offen offset:{128*j}")
        a(f"buffer_load_ushort v{A[j]+1}, v5, s[20:23], s62 offen offset:{128*j+1024}")
    load_tw(a, 40, 3, 24, T_R1, 64)
    load_tw(a, 56, 4, 24, T_R2, 8)
    srd_from_ptr(a, 28, 16, SZ_Y1T, WS_Y1T)
    a(f"s_mul_i32 s61, s50, {FREG}"); a(f"s_add_u32 s61, s61, {L0_FFT}")
    a(f"s_mul_i32 s3, s50, 2080"); a(f"s_add_u32 s3, s3, {L0_XN}"); a("v_add_u32 v89, s3, v5")
    a("v_lshlrev_b32 v84, 3, v1"); a("v_add_u32 v84, s61, v84")
    a("v_lshrrev_b32 v5, 3, v1"); a("v_and_b32 v6, 7, v1")
    a("v_mul_u32_u24 v85, 72, v5"); a("v_add_u32 v86, v85, v6"); a("v_lshlrev_b32 v86, 3, v86"); a("v_add_u32 v86, s61, v86")
    a("v_mul_u32_u24 v87, 9, v6"); a("v_add_u32 v87, v87, v85"); a("v_lshlrev_b32 v87, 3, v87"); a("v_add_u32 v87, s61, v87")
    a("v_lshlrev_b32 v88, 3, v6"); a("v_add_u32 v88, v88, v5"); a("v_lshlrev_b32 v88, 3, v88"); a("v_add_u32 v88, s61, v88")
    a("s_waitcnt vmcnt(8)")
    stamp(a, 1, "k0")
    for j in range(8):
        a(f"v_lshlrev_b32 v{A[j]}, 16, v{A[j]}"); a(f"v_lshlrev_b32 v{A[j]+1}, 16, v{A[j]+1}")
    ln_two_rows_xn(a, A, T, 66, 89)
    stamp(a, 2, "k0")
    bfly8(a, A, B, 64)
    a("s_waitcnt vmcnt(4)")
    for k in range(1, 8): cmul(a, A[k], B[k], TW1[k])
    a(f"ds_write_b64 v84, {P(B[0])}")
    for k in range(1, 8): a(f"ds_write_b64 v84, {P(A[k])} offset:{576*k}")
    for n1 in range(8): a(f"ds_read_b64 {P(A[n1])}, v86 offset:{64*n1}")
    a("s_waitcnt vmcnt(0) lgkmcnt(0)")
    bfly8(a, A, B, 64)
    for k in range(1, 8): cmul(a, A[k], B[k], TW2[k])
    a(f"ds_write_b64 v86, {P(B[0])}")
    for k in range(1, 8): a(f"ds_write_b64 v86, {P(A[k])} offset:{72*k}")
    for n0 in range(8): a(f"ds_read_b64 {P(A[n0])}, v87 offset:{8*n0}")
    a("s_waitcnt lgkmcnt(0)")
    bfly8(a, A, B, 64)
    for k2 in range(8): a(f"ds_write_b64 v88, {P(B[k2])} offset:{512*k2}")
    a(f"ds_write_b64 v88, {P(B[4])} offset:4096")
    Z = [8+2*i for i in range(4)]; ZM = [16+2*i for i in range(4)]
    a("v_lshrrev_b32 v5, 2, v0"); a("v_and_b32 v6, 3, v0")
    a(f"v_mul_u32_u24 v7, {FREG}, v6"); a(f"v_add_u32 v7, {L0_FFT}, v7")
    a("v_lshlrev_b32 v84, 3, v5"); a("v_add_u32 v84, v84, v7")
    a("v_sub_u32 v85, 320, v5"); a("v_lshlrev_b32 v85, 3, v85"); a("v_add_u32 v85, v85, v7")
    stamp(a, 3, "k0")
    a("s_waitcnt lgkmcnt(0)")
    a("s_barrier")
    stamp(a, 4, "k0")
    for j in range(4):
        a(f"ds_read_b64 {P(Z[j])}, v84 offset:{512*j}")
        a(f"ds_read_b64 {P(ZM[j])}, v85 offset:{512*(3-j)}")
    a("v_cmp_eq_u32 vcc, 0, v5")
    a("v_lshlrev_b32 v5, 4, v0"); a(f"s_mul_i32 s3, s49, {RS}")
    a("s_waitcnt lgkmcnt(0)")
    O = [24+4*j for j in range(4)]
    for j in range(4):
        a(f"v_pk_add_f32 {P(O[j])}, {P(Z[j])}, {P(ZM[j])} neg_hi:[0,1]")
        a(f"v_pk_add_f32 {P(O[j]+2)}, {P(Z[j])}, {P(ZM[j])} op_sel:[1,1] op_sel_hi:[0,0] neg_hi:[1,0]")
    a(f"v_add_f32 v{T}, v{Z[0]}, v{Z[0]}"); a(f"v_add_f32 v{T+1}, v{ZM[0]}, v{ZM[0]}")
    a(f"v_add_f32 v{T+2}, v{Z[0]+1}, v{Z[0]+1}"); a(f"v_add_f32 v{T+3}, v{ZM[0]+1}, v{ZM[0]+1}")
    for q in range(4): a(f"v_cndmask_b32 v{O[0]+q}, v{O[0]+q}, v{T+q}, vcc")
    for j in (1, 2, 3, 0):
        a(f"s_add_u32 s62, s3, {4096*j}")
        a(f"buffer_store_dwordx4 v[{O[j]}:{O[j]+3}], v5, s[28:31], s62 offen")
    stamp(a, 5, "k0")
    stamp_flush(a, 6, "k0", 5)
    a("s_endpgm")

WV = 8; XC = 24; DV = 30; WP = 46; DP = 54; PF = 62
def k0_aux(a):
    a("v_lshlrev_b32 v6, 1, v1")
    a("s_and_b32 s62, s2, 0xfc"); a("s_add_u32 s62, s62, s51")
    a("s_lshr_b32 s63, s62, 5")
    a("s_lshr_b32 s3, s62, 2"); a("s_and_b32 s3, s3, 7"); a("s_lshl_b32 s3, s3, 3"); a("s_add_u32 s63, s63, s3")
    a("s_and_b32 s3, s62, 3"); a("s_lshl_b32 s3, s3, 7"); a("s_add_u32 s63, s63, s3")
    a("s_mul_i32 s63, s63, 514")
    a("s_and_b32 s66, s2, 3"); a("s_lshl_b32 s66, s66, 7"); a("s_add_u32 s66, s66, s63")
    a(f"v_and_b32 v{XC}, 7, v1"); a(f"v_lshrrev_b32 v{XC+1}, 2, v{XC}"); a(f"v_and_b32 v{XC+2}, 3, v{XC}")
    a(f"v_mul_u32_u24 v{XC+1}, 32896, v{XC+1}"); a(f"v_mul_u32_u24 v{XC+2}, 263168, v{XC+2}"); a(f"v_add_u32 v{XC+1}, v{XC+1}, v{XC+2}")
    a("s_lshl_b32 s67, s2, 2"); a("s_add_u32 s67, s67, s51")
    a("v_and_b32 v7, 31, v1"); a("v_lshlrev_b32 v7, 1, v7")
    a("v_lshrrev_b32 v2, 5, v1"); a("v_lshlrev_b32 v2, 12, v2"); a("v_add_u32 v7, v7, v2")
    a("v_add_u32 v2, 0x2000, v7")
    a("v_and_b32 v4, 31, v1"); a("v_min_u32 v4, 23, v4"); a("v_lshlrev_b32 v4, 6, v4")
    a("v_lshrrev_b32 v5, 5, v1"); a("v_mul_u32_u24 v5, 2752, v5"); a("v_add_u32 v4, v4, v5")
    a("s_lshr_b32 s70, s2, 3"); a("s_and_b32 s70, s70, 31"); a("s_lshl_b32 s70, s70, 2"); a("s_add_u32 s70, s70, s51")
    a(f"s_mul_i32 s70, s70, {4*2752}")
    a("s_and_b32 s3, s2, 4"); a("s_mul_i32 s3, s3, 384"); a("s_add_u32 s70, s70, s3")
    a(f"s_add_u32 s71, s70, {2*2752}")
    a("s_waitcnt lgkmcnt(0)")
    srd_from_ptr(a, 32, 6, 2048*514)
    srd_from_ptr(a, 36, 8, 2048*514)
    for r in range(8):
        koff = (64*(r >> 2) + 512*(r & 3))*514
        a(f"s_add_u32 s3, s66, {koff}")
        a(f"buffer_load_ushort v{WV+2*r}, v6, s[32:35], s3 offen")
        a(f"buffer_load_ushort v{WV+2*r+1}, v6, s[36:39], s3 offen")
    a(f"buffer_load_ushort v{XC+3}, v{XC+1}, s[32:35], s63 offen offset:512")
    a(f"buffer_load_ushort v{XC+4}, v{XC+1}, s[36:39], s63 offen offset:512")
    srd_from_ptr(a, 44, 14, 1376*1024)
    def wd_loads(sf, dv):
        a(f"s_lshr_b32 s69, s{sf}, 4"); a("s_lshl_b32 s69, s69, 14")
        a(f"s_and_b32 s3, s{sf}, 15"); a("s_lshl_b32 s3, s3, 6"); a("s_add_u32 s69, s69, s3")
        for e in range(8):
            a(f"buffer_load_ushort v{dv+e}, v{7 if e < 4 else 2}, s[44:47], s69 offen offset:{1024*(e&3)}")
    wd_loads(67, DV)
    a("s_add_u32 s68, s67, 1024")
    wd_loads(68, DV+8)
    npf = 0
    if os.environ.get("PFW", "1") == "1":
        srd_from_ptr(a, 72, 10, 512*2752)
        srd_from_ptr(a, 76, 12, 512*2752)
        a(f"buffer_load_dword v{PF}, v4, s[72:75], s70 offen")
        a(f"buffer_load_dword v{PF+1}, v4, s[76:79], s70 offen")
        a(f"buffer_load_dword v{PF+2}, v4, s[72:75], s71 offen")
        a(f"buffer_load_dword v{PF+3}, v4, s[76:79], s71 offen")
        npf += 4
    if os.environ.get("PFC", "1") == "1":
        a("s_getpc_b64 s[72:73]")
        a.raw("L_k0_pc2:")
        a("s_add_u32 s72, s72, k1_kernel-L_k0_pc2")
        a("s_addc_u32 s73, s73, 0")
        a("s_and_b32 s73, s73, 0xffff")
        a(f"s_mov_b32 s74, TWTAB+{TAB_SIZE}-k1_kernel")
        a("s_mov_b32 s75, 0x00020000")
        a("v_and_b32 v5, 15, v1"); a("v_lshlrev_b32 v5, 6, v5")
        a("s_lshr_b32 s70, s2, 3"); a("s_and_b32 s70, s70, 31"); a("s_lshl_b32 s70, s70, 2"); a("s_add_u32 s70, s70, s51"); a("s_lshl_b32 s70, s70, 10")
        a(f"buffer_load_dword v{PF+4}, v5, s[72:75], s70 offen")
        npf += 1
    srd_from_ptr(a, 40, 16, SZ_WT, WS_WT)
    srd_from_ptr(a, 24, 16, SZ_WD, WS_WD)
    srd_from_ptr(a, 28, 16, SZ_XN, WS_XN)
    a("s_add_u32 s3, s2, s51"); a("s_cmp_eq_u32 s3, 0"); a("s_cbranch_scc0 L_k0_nf")
    srd_from_ptr(a, 20, 16, SZ_FLAG, WS_FLAG)
    for q in range(4): a(f"v_mov_b32 v{PF+6+q}, 0")
    for q in range(4): a(f"buffer_store_dwordx4 v[{PF+6}:{PF+9}], v3, s[20:23], 0 offen offset:{1024*q}")
    a("s_waitcnt vmcnt(0)")
    a.label("L_k0_nf")
    a("v_mul_u32_u24 v6, 144, v1"); a("s_lshl_b32 s3, s51, 5"); a(f"s_add_u32 s3, s3, {L0_WJ}"); a("v_add_u32 v6, s3, v6")
    a(f"s_waitcnt vmcnt({16+npf})")
    stamp(a, 1, "k0")
    for r in range(8): a(f"v_lshl_or_b32 v{WP+r}, v{WV+2*r+1}, 16, v{WV+2*r}")
    a(f"ds_write_b128 v6, v[{WP}:{WP+3}]"); a(f"ds_write_b128 v6, v[{WP+4}:{WP+7}] offset:16")
    a(f"v_lshl_or_b32 v{XC+3}, v{XC+4}, 16, v{XC+3}")
    a(f"v_lshlrev_b32 v{XC}, 2, v{XC}"); a("s_lshl_b32 s69, s62, 5"); a("s_add_u32 s69, s69, 0x200000")
    a(f"buffer_store_dword v{XC+3}, v{XC}, s[40:43], s69 offen")
    a(f"s_waitcnt vmcnt({1+npf})")
    stamp(a, 2, "k0")
    for half in (0, 1):
        dv = DV + 8*half
        for q in range(4): a(f"v_lshl_or_b32 v{DP+4*half+q}, v{dv+2*q+1}, 16, v{dv+2*q}")
    for half, sf in ((0, 67), (1, 68)):
        a(f"s_lshl_b32 s3, s{sf}, 10")
        a(f"buffer_store_dwordx4 v[{DP+4*half}:{DP+3+4*half}], v3, s[24:27], s3 offen")
    a("v_lshrrev_b32 v5, 3, v1"); a("v_and_b32 v6, 7, v1"); a("s_lshl_b32 s3, s51, 4"); a("v_add_u32 v5, s3, v5")
    a("v_mul_u32_u24 v7, 144, v5"); a("v_lshlrev_b32 v8, 4, v6"); a("v_add_u32 v7, v7, v8")
    a(f"v_add_u32 v7, {L0_WJ}, v7")
    a("v_lshlrev_b32 v5, 13, v5"); a("v_add_u32 v5, v5, v8")
    a("s_and_b32 s62, s2, 3"); a("s_lshl_b32 s62, s62, 19")
    a("s_lshr_b32 s63, s2, 2"); a("s_lshl_b32 s63, s63, 7"); a("s_add_u32 s62, s62, s63")
    a("s_add_u32 s63, s62, 0x10000")
    a("v_lshrrev_b32 v9, 3, v1"); a("s_lshl_b32 s3, s51, 3"); a("v_add_u32 v9, s3, v9")
    a("v_mul_u32_u24 v10, 1040, v6"); a("v_lshl_add_u32 v10, v9, 4, v10"); a(f"v_add_u32 v10, {L0_XN}, v10")
    a("v_lshrrev_b32 v11, 1, v9"); a("v_lshlrev_b32 v11, 10, v11"); a("v_and_b32 v9, 1, v9"); a("v_lshl_add_u32 v11, v9, 9, v11")
    a("v_add_u32 v11, v11, v8")
    a("s_lshr_b32 s66, s49, 2"); a("s_lshl_b32 s66, s66, 15"); a("s_and_b32 s3, s49, 3"); a("s_lshl_b32 s3, s3, 7"); a("s_add_u32 s66, s66, s3")
    a("s_add_u32 s67, s66, 0x4000")
    stamp(a, 3, "k0")
    a("s_waitcnt lgkmcnt(0)")
    a("s_barrier")
    stamp(a, 4, "k0")
    a("ds_read_b128 v[12:15], v10"); a("ds_read_b128 v[16:19], v10 offset:512")
    a("ds_read_b128 v[20:23], v7"); a(f"ds_read_b128 v[24:27], v7 offset:{8*144}")
    a("s_waitcnt lgkmcnt(2)")
    a("buffer_store_dwordx4 v[12:15], v11, s[28:31], s66 offen")
    a("buffer_store_dwordx4 v[16:19], v11, s[28:31], s67 offen")
    a("s_waitcnt lgkmcnt(0)")
    a("buffer_store_dwordx4 v[20:23], v5, s[40:43], s62 offen")
    a("buffer_store_dwordx4 v[24:27], v5, s[40:43], s63 offen")
    stamp(a, 5, "k0")
    stamp_flush(a, 6, "k0", 5)
    a("s_endpgm")

def k0_kernel(a):
    stamp(a, 0, "k0")
    a("s_load_dwordx4 s[4:7], s[0:1], 0")
    a("s_load_dwordx2 s[8:9], s[0:1], 16")
    a("s_load_dwordx2 s[10:11], s[0:1], 32"); a("s_load_dwordx2 s[12:13], s[0:1], 40")
    a("s_load_dwordx2 s[14:15], s[0:1], 48")
    a("s_load_dwordx2 s[16:17], s[0:1], 72")
    srd_table(a, 24, "L_k0_pc")
    a(f"s_mov_b32 s64, {fhex(R2)}"); a(f"s_mov_b32 s65, {fhex(R2)}")
    a("v_and_b32 v1, 63, v0")
    a("v_lshrrev_b32 v2, 6, v0")
    a("v_readfirstlane_b32 s50, v2")
    a("v_lshlrev_b32 v3, 4, v1")
    rowgroup_map(a, 49, 2)
    a("s_and_b32 s51, s50, 3")
    a("s_cmp_ge_u32 s50, 4"); a("s_cbranch_scc1 L_k0_aux")
    k0_fft(a)
    a.label("L_k0_aux")
    k0_aux(a)
```

```python
from gen_common import *
from gen_n0 import *

HS = 12352; NSLOT = 6
K1G_LDS = NSLOT*HS
ACC = 32; AF = 128; XR = 176; NXR = 8
K1_VGPR = 208
VWD = 8
VB = 11

C1 = -2.0*math.sqrt(2.0/math.pi)*math.log2(math.e)
C2 = C1*0.044715

def k1_epilogue_unit(a, c, T):
    for i in range(0, 8, 2):
        g = c + i; up = c + 8 + i; t = T + 2*i
        a(f"v_cvt_pk_bf16_f32 v{t}, v{g}, v{g+1}"); a(f"v_cvt_pk_bf16_f32 v{t+1}, v{up}, v{up+1}")
    for i in range(0, 8, 2):
        g = c + i; up = c + 8 + i; t = T + 2*i
        a(f"v_lshlrev_b32 v{g}, 16, v{t}"); a(f"v_and_b32 v{g+1}, 0xffff0000, v{t}")
        a(f"v_lshlrev_b32 v{up}, 16, v{t+1}"); a(f"v_and_b32 v{up+1}, 0xffff0000, v{t+1}")
    for i in range(0, 8, 2):
        g = c + i; t = T + 2*i
        a(f"v_pk_mul_f32 {P(t)}, {P(g)}, {P(g)}")
    for i in range(0, 8, 2):
        t = T + 2*i
        a(f"v_pk_fma_f32 {P(t)}, {P(t)}, s[60:61], v[14:15]")
    for i in range(0, 8, 2):
        g = c + i; t = T + 2*i
        a(f"v_pk_mul_f32 {P(t)}, {P(t)}, {P(g)}")
    for i in range(0, 8, 2):
        t = T + 2*i
        a(f"v_exp_f32 v{t}, v{t}"); a(f"v_exp_f32 v{t+1}, v{t+1}")
    for i in range(0, 8, 2):
        t = T + 2*i
        a(f"v_pk_add_f32 {P(t)}, {P(t)}, 1.0 op_sel_hi:[1,0]")
    for i in range(0, 8, 2):
        t = T + 2*i
        a(f"v_rcp_f32 v{t}, v{t}"); a(f"v_rcp_f32 v{t+1}, v{t+1}")
    for i in range(0, 8, 2):
        g = c + i; t = T + 2*i
        a(f"v_pk_mul_f32 {P(g)}, {P(g)}, {P(t)}")
    for i in range(0, 8, 2):
        g = c + i; t = T + 2*i
        a(f"v_cvt_pk_bf16_f32 v{t}, v{g}, v{g+1}")
    for i in range(0, 8, 2):
        g = c + i; t = T + 2*i
        a(f"v_lshlrev_b32 v{g}, 16, v{t}"); a(f"v_and_b32 v{g+1}, 0xffff0000, v{t}")
    for i in range(0, 8, 2):
        g = c + i; up = c + 8 + i
        a(f"v_pk_mul_f32 {P(g)}, {P(g)}, {P(up)}")
    for i in range(0, 8, 2):
        g = c + i
        a(f"v_cvt_pk_bf16_f32 v{T+16+i//2}, v{g}, v{g+1}")

def k1_gemm_role(a):
    stamp(a, 0, "k1")
    if os.environ.get("PRIO", "1") == "1": a("s_setprio 3")
    a("s_load_dwordx2 s[10:11], s[0:1], 32"); a("s_load_dwordx2 s[12:13], s[0:1], 40")
    a("s_load_dwordx2 s[16:17], s[0:1], 72")
    a("v_and_b32 v1, 63, v0")
    a("v_lshrrev_b32 v2, 6, v0")
    a("v_readfirstlane_b32 s50, v2")
    a("v_lshlrev_b32 v3, 4, v1")
    for p in range(3):
        a(f"v_add_u32 v{VWD+p}, {p*64}, v1")
        a(f"v_mul_u32_u24 v5, 0x5556, v{VWD+p}"); a("v_lshrrev_b32 v5, 18, v5")
        a(f"v_mul_u32_u24 v6, 12, v5"); a(f"v_sub_u32 v6, v{VWD+p}, v6")
        a(f"v_mul_u32_u24 v5, 2752, v5"); a(f"v_lshl_add_u32 v{VWD+p}, v6, 4, v5")
    a("s_lshr_b32 s55, s50, 1")
    a("s_and_b32 s56, s50, 1")
    a(f"s_mul_i32 s57, s56, {16*2752}")
    a("s_mul_i32 s59, s71, 6"); a("s_min_u32 s59, s59, 80"); a("s_lshl_b32 s60, s59, 5"); a("s_add_u32 s57, s57, s60")
    a("s_mul_i32 s58, s55, 6176"); a("s_mul_i32 s60, s56, 3072"); a("s_add_u32 s58, s58, s60")
    a("s_lshl_b32 s54, s70, 2"); a("s_add_u32 s54, s54, s50")
    a("s_lshl_b32 s53, s54, 15")
    a("v_lshrrev_b32 v5, 4, v1"); a("v_and_b32 v6, 1, v5"); a("v_lshrrev_b32 v5, 1, v5")
    a("v_and_b32 v7, 15, v1"); a("v_lshrrev_b32 v13, 2, v7"); a("v_and_b32 v7, 3, v7")
    a("v_lshl_add_u32 v5, v5, 3, v13"); a("v_mul_u32_u24 v5, 192, v5"); a("v_mul_u32_u24 v6, 6176, v6"); a("v_add_u32 v5, v5, v6")
    a(f"v_lshl_add_u32 v{VB}, v7, 3, v5")
    a(f"v_add_u32 v{VB+1}, {3*HS}, v{VB}")
    a("s_cmp_eq_u32 s55, 0")
    a("s_waitcnt lgkmcnt(0)")
    a("s_cselect_b32 s72, s10, s12"); a("s_cselect_b32 s73, s11, s13")
    a("s_and_b32 s73, s73, 0xffff"); a(f"s_mov_b32 s74, {512*2752}"); a("s_mov_b32 s75, 0x00020000")
    srd_from_ptr(a, 20, 16, SZ_XN, WS_XN)
    issued = []
    def w_dma(stage):
        for p in range(3):
            a(f"s_add_u32 m0, s58, {(stage % NSLOT)*HS + p*1024}")
            a(f"buffer_load_dwordx4 v{VWD+p}, s[72:75], s57 offen lds")
            issued.append(("w", stage))
        a(f"s_add_u32 s57, s57, {32*2752}")
    def x_load(j):
        d = XR + 4*(j % NXR)
        a(f"buffer_load_dwordx4 v[{d}:{d+3}], v3, s[20:23], s53 offen offset:{1024*(j&3)}")
        issued.append(("x", j))
        if (j & 3) == 3: a("s_add_u32 s53, s53, 4096")
    def need(tags):
        last = max(i for i, t in enumerate(issued) if t in tags)
        return len(issued) - 1 - last
    w_dma(0); x_load(0); x_load(1)
    w_dma(1); x_load(2); x_load(3)
    pend = [("w", 2), ("x", 4), ("x", 5), ("w", 3), ("x", 6), ("x", 7), ("w", 4), ("w", 5)]
    srd_from_ptr(a, 76, 16, SZ_H, WS_H)
    a("s_lshl_b32 s59, s59, 16"); a("s_lshl_b32 s60, s54, 10"); a("s_add_u32 s59, s59, s60")
    a(f"v_mov_b32 v14, {fhex(C1)}"); a(f"v_mov_b32 v15, {fhex(C1)}")
    a(f"s_mov_b32 s60, {fhex(C2)}"); a(f"s_mov_b32 s61, {fhex(C2)}")
    def rd(stage, kk, u, buf):
        slot = stage % NSLOT
        base = VB + slot//3
        off = (slot % 3)*HS + kk*3072 + u*32
        d = AF + 24*buf + 4*u
        return [f"ds_read_b64_tr_b16 v[{d}:{d+1}], v{base} offset:{off}", f"ds_read_b64_tr_b16 v[{d+2}:{d+3}], v{base} offset:{off+768}"]
    def issue_one():
        if not pend: return
        t = pend.pop(0)
        if t[0] == "w": w_dma(t[1])
        else: x_load(t[1])
    NPRE = int(os.environ.get("NPRE", "3"))
    for i in range(NPRE): issue_one()
    stamp(a, 1, "k1")
    a(f"s_waitcnt vmcnt({need([('w', 0)])})")
    a("s_barrier")
    stamp(a, 2, "k1")
    for u in range(6):
        for t in rd(0, 0, u, 0): a(t)
    for j in range(32):
        st, kk = j >> 1, j & 1
        nst, nkk = (j+1) >> 1, (j+1) & 1
        for u in range(6):
            if u == 0:
                tags = [("x", j)]
                bar = (kk == 1 and st < 15)
                if bar: tags.append(("w", st+1))
                n = need(tags)
                a(f"s_waitcnt vmcnt({n})")
                if bar:
                    a("s_barrier")
                    if st >= 1 and st+5 < 16: pend.append(("w", st+5))
            if j < 31: a("s_waitcnt lgkmcnt(10)")
            else: a(f"s_waitcnt lgkmcnt({10-2*u})")
            x = XR + 4*(j % NXR); d = AF + 24*(j & 1) + 4*u; c = ACC + 16*u
            cs = "0" if j == 0 else f"v[{c}:{c+15}]"
            a(f"v_mfma_f32_32x32x16_bf16 v[{c}:{c+15}], v[{d}:{d+3}], v[{x}:{x+3}], {cs}")
            if j < 31:
                for t in rd(nst, nkk, u, (j+1) & 1): a(t)
            if u == 5 and j + NXR < 32: pend.append(("x", j+NXR))
            if u in (0, 2, 5): issue_one()
        if j == 15: stamp(a, 3, "k1")
    assert not pend
    stamp(a, 4, "k1")
    for u in range(6):
        T = 128 + 24*(u % 3)
        k1_epilogue_unit(a, ACC + 16*u, T)
        a(f"buffer_store_dwordx4 v[{T+16}:{T+19}], v3, s[76:79], s59 offen")
        if u < 5: a("s_add_u32 s59, s59, 0x10000")
    stamp(a, 5, "k1")
    stamp_flush(a, 6, "k1", 5)
    a("s_endpgm")
```

```python
from gen_common import *
from gen_n0 import *

RQ = 5152
K2R_LDS = 4*RQ
def k2_row_role(a):
    A = [8+2*i for i in range(8)]; B = [24+2*i for i in range(8)]
    TW1 = [40+2*i for i in range(8)]; TW2 = [56+2*i for i in range(8)]
    Y = 72
    stamp(a, 0, "k3")
    a("s_load_dwordx2 s[12:13], s[0:1], 72")
    rowgroup_map(a, 14, 2)
    srd_table(a, 20, "L_k3_pc")
    a(f"s_mov_b32 s48, {fhex(R2)}"); a(f"s_mov_b32 s49, {fhex(R2)}")
    a("v_and_b32 v1, 63, v0")
    a("v_lshrrev_b32 v2, 6, v0")
    a("v_readfirstlane_b32 s50, v2")
    a("v_lshrrev_b32 v5, 3, v1"); a("v_and_b32 v6, 7, v1")
    a("v_lshlrev_b32 v3, 4, v1"); a("v_lshlrev_b32 v4, 4, v6")
    a("s_lshl_b32 s51, s14, 3"); a("s_lshl_b32 s52, s50, 1"); a("s_add_u32 s51, s51, s52")
    a("v_lshrrev_b32 v120, 2, v0"); a("v_and_b32 v121, 3, v0")
    a(f"v_mul_u32_u24 v122, {CSTR}, v120"); a("v_lshlrev_b32 v123, 4, v121"); a("v_add_u32 v122, v122, v123")
    a("s_lshl_b32 s53, s14, 6")
    a("s_waitcnt lgkmcnt(0)")
    stamp(a, 1, "k3")
    srd_from_ptr(a, 28, 12, SZ_Y2T, WS_Y2T)
    for i in range(4):
        a(f"buffer_load_dwordx4 v[{Y+4*i}:{Y+4*i+3}], v122, s[28:31], s53 offen")
        if i < 3: a(f"s_add_u32 s53, s53, {64*CSTR}")
    load_tw(a, TW2[0], 4, 20, T_R2, 8)
    load_tw(a, TW1[0], 3, 20, T_R1, 64)
    srd_from_ptr(a, 24, 12, SZ_S, WS_S)
    srd_from_ptr(a, 32, 12, SZ_FLAG, WS_FLAG)
    a("s_lshl_b32 s55, s51, 10")
    a("v_lshrrev_b32 v123, 3, v120"); a("v_add_u32 v123, v123, v120"); a("v_lshlrev_b32 v123, 4, v123")
    a(f"v_mul_u32_u24 v124, {RQ}, v121"); a("v_add_u32 v123, v123, v124")
    a(f"s_mul_i32 s61, s50, {RQ}")
    a("v_mul_u32_u24 v124, 9, v6"); a("v_add_u32 v125, v124, v5"); a("v_lshlrev_b32 v125, 4, v125"); a("v_add_u32 v125, s61, v125")
    a("v_lshlrev_b32 v7, 3, v6"); a("v_add_u32 v7, v7, v5")
    a("v_sub_u32 v126, 64, v7"); a("v_lshrrev_b32 v127, 3, v126"); a("v_add_u32 v126, v126, v127"); a("v_lshlrev_b32 v126, 4, v126"); a("v_add_u32 v126, s61, v126")
    a("v_sub_u32 v127, 256, v7"); a("v_and_b32 v127, 255, v127"); a("v_lshrrev_b32 v128, 3, v127"); a("v_add_u32 v127, v127, v128"); a("v_lshlrev_b32 v127, 4, v127"); a("v_add_u32 v127, s61, v127")
    a("v_lshlrev_b32 v129, 3, v1"); a("v_add_u32 v129, s61, v129")
    a("v_mul_u32_u24 v130, 72, v5"); a("v_add_u32 v131, v130, v6"); a("v_lshlrev_b32 v131, 3, v131"); a("v_add_u32 v131, s61, v131")
    a("v_add_u32 v132, v124, v130"); a("v_lshlrev_b32 v132, 3, v132"); a("v_add_u32 v132, s61, v132")
    a("v_lshlrev_b32 v133, 4, v5"); a("v_add_u32 v133, v133, v129")
    a("v_mul_u32_u24 v134, 80, v1"); a("v_add_u32 v134, s61, v134")
    stamp(a, 2, "k3")
    a("s_waitcnt vmcnt(8)")
    stamp(a, 3, "k3")
    for i in range(4): a(f"ds_write_b128 v123, v[{Y+4*i}:{Y+4*i+3}] offset:{72*16*i}")
    a("s_waitcnt lgkmcnt(0)"); a("s_barrier")
    for k2 in range(4): a(f"ds_read_b128 v[{Y+4*k2}:{Y+4*k2+3}], v125 offset:{72*16*k2}")
    a(f"ds_read_b128 v[{Y+16}:{Y+19}], v127")
    for k2 in range(5, 8): a(f"ds_read_b128 v[{Y+4*k2}:{Y+4*k2+3}], v126 offset:{72*16*(7-k2)}")
    a("s_waitcnt lgkmcnt(0)")
    stamp(a, 4, "k3")
    for k2 in range(4):
        y = Y + 4*k2
        cadd_pi(a, A[k2], y, y+2)
    for k2 in range(4, 8):
        y = Y + 4*k2
        if NPK[0]:
            a(f"v_add_f32 v{A[k2]}, v{y}, v{y+3}"); a(f"v_sub_f32 v{A[k2]+1}, v{y+2}, v{y+1}")
        else: a(f"v_pk_add_f32 {P(A[k2])}, {P(y)}, {P(y+2)} op_sel:[0,1] op_sel_hi:[1,0] neg_hi:[1,0]")
    a("v_cmp_eq_u32 vcc, 0, v1")
    a(f"v_cndmask_b32 v{A[0]}, v{A[0]}, v{Y}, vcc"); a(f"v_cndmask_b32 v{A[0]+1}, v{A[0]+1}, v{Y+2}, vcc")
    a(f"v_cndmask_b32 v{A[4]}, v{A[4]}, v{Y+17}, vcc"); a(f"v_cndmask_b32 v{A[4]+1}, v{A[4]+1}, v{Y+19}, vcc")
    bfly8(a, A, B, 48, inv=True)
    for n0 in range(8): a(f"ds_write_b64 v132, {P(B[n0])} offset:{8*n0}")
    a(f"ds_read_b64 {P(A[0])}, v131")
    for k in range(1, 8): a(f"ds_read_b64 {P(B[k])}, v131 offset:{72*k}")
    a("s_waitcnt vmcnt(4) lgkmcnt(0)")
    for k in range(1, 8): cmul(a, A[k], B[k], TW2[k], conj=True)
    bfly8(a, A, B, 48, inv=True)
    for n1 in range(8): a(f"ds_write_b64 v131, {P(B[n1])} offset:{64*n1}")
    a(f"ds_read_b64 {P(A[0])}, v129")
    for k in range(1, 8): a(f"ds_read_b64 {P(B[k])}, v129 offset:{576*k}")
    a("s_waitcnt vmcnt(0) lgkmcnt(0)")
    for k in range(1, 8): cmul(a, A[k], B[k], TW1[k], conj=True)
    bfly8(a, A, B, 48, inv=True)
    for j in range(8): a(f"ds_write_b64 v133, {P(B[j])} offset:{640*j}")
    for q in range(4): a(f"ds_read_b128 v[{A[2*q]}:{A[2*q]+3}], v134 offset:{16*q}")
    sc = 1.0/(2*2048*512)
    a(f"s_mov_b32 s46, {fhex(sc)}"); a(f"s_mov_b32 s47, {fhex(sc)}")
    a("s_lshl_b32 s56, s14, 2"); a("s_add_u32 s56, s56, s50"); a("s_lshl_b32 s56, s56, 2")
    a("v_mov_b32 v40, 1"); a("v_mov_b32 v41, 0")
    a("s_waitcnt lgkmcnt(0)")
    stamp(a, 5, "k3")
    for e in range(8): cscale(a, A[e], A[e], 46)
    OUT = 120
    for row in range(2):
        for q in range(4):
            e0, e1 = A[2*q]+row, A[2*q+1]+row
            a(f"v_cvt_pk_bf16_f32 v{OUT+4*row+q}, v{e0}, v{e1}")
    stamp(a, 6, "k3")
    a(f"buffer_store_dwordx4 v[{OUT}:{OUT+3}], v3, s[24:27], s55 offen")
    a(f"buffer_store_dwordx4 v[{OUT+4}:{OUT+7}], v3, s[24:27], s55 offen offset:1024")
    a("s_waitcnt vmcnt(0)")
    a("buffer_store_dword v40, v41, s[32:35], s56 offen")
    stamp_flush(a, 7, "k3", 5)
    a("s_endpgm")

K2G_RED = 0; K2G_TILE = 49152; K2_GEMM_LDS = K2G_TILE + 64*144
PD = 6
NS = 22
K2_VGPR = 168

def k2_gemm_role(a):
    ACC = 8
    FB = 72
    XV = 136; SV = 144
    stamp(a, 0, "k2g")
    a("s_load_dwordx2 s[12:13], s[0:1], 72")
    a("s_load_dwordx2 s[4:5], s[0:1], 0")
    a("s_load_dwordx2 s[6:7], s[0:1], 56")
    a("v_and_b32 v1, 63, v0"); a("v_lshrrev_b32 v2, 6, v0"); a("v_readfirstlane_b32 s50, v2")
    a("v_lshlrev_b32 v3, 4, v1")
    a("s_and_b32 s51, s2, 3"); a("s_lshl_b32 s51, s51, 3"); a("s_and_b32 s3, s2, 4"); a("s_add_u32 s51, s51, s3")
    a("s_lshr_b32 s3, s2, 3"); a("s_and_b32 s3, s3, 3"); a("s_add_u32 s51, s51, s3")
    a("s_lshr_b32 s52, s2, 5")
    a("s_mul_i32 s53, s50, 22")
    a("s_lshl_b32 s54, s53, 14"); a("s_lshl_b32 s3, s52, 11"); a("s_add_u32 s54, s54, s3")
    a("s_lshl_b32 s55, s53, 16"); a("s_lshl_b32 s3, s51, 11"); a("s_add_u32 s55, s55, s3")
    a("s_waitcnt lgkmcnt(0)")
    srd_from_ptr(a, 20, 12, SZ_WD, WS_WD)
    srd_from_ptr(a, 24, 12, SZ_H, WS_H)
    def loads(s):
        b = FB + 16*(s % PD)
        L = [f"buffer_load_dwordx4 v[{b}:{b+3}], v3, s[20:23], s54 offen",
             f"buffer_load_dwordx4 v[{b+8}:{b+11}], v3, s[24:27], s55 offen",
             f"buffer_load_dwordx4 v[{b+4}:{b+7}], v3, s[20:23], s54 offen offset:1024",
             f"buffer_load_dwordx4 v[{b+12}:{b+15}], v3, s[24:27], s55 offen offset:1024",
             "s_add_u32 s54, s54, 0x4000", "s_add_u32 s55, s55, 0x10000"]
        return L
    for s in range(PD):
        for t in loads(s): a(t)
    srd_from_ptr(a, 28, 12, SZ_S, WS_S)
    srd_from_ptr(a, 32, 12, SZ_FLAG, WS_FLAG)
    srd_from_ptr(a, 36, 4, 2048*1024)
    srd_from_ptr(a, 40, 6, 2048*1024)
    stamp(a, 1, "k2g")
    for s in range(NS):
        b = FB + 16*(s % PD)
        later = min(NS-1, s+PD-1) - s
        def cs(c): return "0" if s == 0 else f"v[{c}:{c+15}]"
        a(f"s_waitcnt vmcnt({4*later+2})")
        a(f"v_mfma_f32_32x32x16_bf16 v[{ACC}:{ACC+15}], v[{b}:{b+3}], v[{b+8}:{b+11}], {cs(ACC)}")
        a(f"s_waitcnt vmcnt({4*later})")
        a(f"v_mfma_f32_32x32x16_bf16 v[{ACC+32}:{ACC+47}], v[{b+4}:{b+7}], v[{b+8}:{b+11}], {cs(ACC+32)}")
        a(f"v_mfma_f32_32x32x16_bf16 v[{ACC+16}:{ACC+31}], v[{b}:{b+3}], v[{b+12}:{b+15}], {cs(ACC+16)}")
        a(f"v_mfma_f32_32x32x16_bf16 v[{ACC+48}:{ACC+63}], v[{b+4}:{b+7}], v[{b+12}:{b+15}], {cs(ACC+48)}")
        if s + PD < NS:
            for t in loads(s+PD): a(t)
    stamp(a, 2, "k2g")
    a("v_lshrrev_b32 v152, 3, v0"); a("v_and_b32 v153, 7, v0"); a("v_lshlrev_b32 v153, 4, v153")
    a("v_mul_u32_u24 v154, 144, v152"); a("v_add_u32 v154, v154, v153")
    a("v_lshl_add_u32 v152, v152, 10, v153")
    a("s_lshl_b32 s58, s51, 16"); a("s_lshl_b32 s3, s52, 7"); a("s_add_u32 s58, s58, s3"); a("s_add_u32 s59, s58, 0x8000")
    a("v_and_b32 v155, 31, v1"); a("v_lshlrev_b32 v155, 2, v155"); a("s_lshl_b32 s60, s51, 7")
    a(f"buffer_load_dwordx4 v[{XV}:{XV+3}], v152, s[36:39], s58 offen")
    a(f"buffer_load_dwordx4 v[{XV+4}:{XV+7}], v152, s[36:39], s59 offen")
    a("s_mov_b32 s61, 0")
    a.label("L_k2g_poll")
    a("buffer_load_dword v156, v155, s[32:35], s60 offen sc0 sc1")
    a("s_add_u32 s61, s61, 1")
    a("s_waitcnt vmcnt(0)")
    a("v_cmp_ne_u32 vcc, 1, v156")
    a("s_cmp_eq_u64 vcc, 0")
    a("s_cbranch_scc1 L_k2g_go")
    a("s_sleep 2")
    a("s_cmp_lt_u32 s61, 0x40000")
    a("s_cbranch_scc1 L_k2g_poll")
    a.label("L_k2g_go")
    a(f"buffer_load_dwordx4 v[{SV}:{SV+3}], v152, s[28:31], s58 offen sc0 sc1")
    a(f"buffer_load_dwordx4 v[{SV+4}:{SV+7}], v152, s[28:31], s59 offen sc0 sc1")
    stamp(a, 3, "k2g")
    for q in range(4):
        a(f"s_sub_u32 s56, s50, {q+1}"); a("s_and_b32 s56, s56, 3"); a("s_lshl_b32 s56, s56, 12"); a(f"s_add_u32 s56, s56, {q*12288}")
        a("v_add_u32 v4, s56, v3")
        a(f"s_cmp_eq_u32 s50, {q}"); a(f"s_cbranch_scc1 L_k2g_own{q}")
        for i in range(4): a(f"ds_write_b128 v4, v[{ACC+16*q+4*i}:{ACC+16*q+4*i+3}] offset:{1024*i}")
        a(f"s_branch L_k2g_nx{q}")
        a.label(f"L_k2g_own{q}")
        for i in range(16): a(f"v_mov_b32 v{FB+i}, v{ACC+16*q+i}")
        a.label(f"L_k2g_nx{q}")
    a("s_waitcnt lgkmcnt(0)"); a("s_barrier")
    a("s_mul_i32 s56, s50, 12288"); a("v_add_u32 v4, s56, v3")
    for i in range(12): a(f"ds_read_b128 v[{ACC+4*i}:{ACC+4*i+3}], v4 offset:{1024*i}")
    a("v_and_b32 v5, 31, v1"); a("v_lshrrev_b32 v6, 5, v1")
    a("s_and_b32 s56, s50, 1"); a("s_lshl_b32 s56, s56, 5"); a("v_add_u32 v5, s56, v5"); a("v_mul_u32_u24 v5, 144, v5")
    a("s_lshr_b32 s56, s50, 1"); a("s_lshl_b32 s56, s56, 6"); a(f"s_add_u32 s56, s56, {K2G_TILE}")
    a("v_lshl_add_u32 v5, v6, 3, v5"); a("v_add_u32 v5, s56, v5")
    a("s_waitcnt lgkmcnt(0)")
    for i in range(16):
        a(f"v_add_f32 v{FB+i}, v{FB+i}, v{ACC+i}"); a(f"v_add_f32 v{ACC+16+i}, v{ACC+16+i}, v{ACC+32+i}")
    for i in range(16): a(f"v_add_f32 v{FB+i}, v{FB+i}, v{ACC+16+i}")
    NL2E = -math.log2(math.e)
    for i in range(0, 16, 2):
        y = FB + i; t = ACC + 2*i
        a(f"v_cvt_pk_bf16_f32 v{t}, v{y}, v{y+1}")
        a(f"v_lshlrev_b32 v{y}, 16, v{t}"); a(f"v_and_b32 v{y+1}, 0xffff0000, v{t}")
        a(f"v_mul_f32 v{t}, {fhex(NL2E)}, v{y}"); a(f"v_mul_f32 v{t+1}, {fhex(NL2E)}, v{y+1}")
        a(f"v_exp_f32 v{t}, v{t}"); a(f"v_exp_f32 v{t+1}, v{t+1}")
    for i in range(0, 16, 2):
        t = ACC + 2*i
        a(f"v_add_f32 v{t}, 1.0, v{t}"); a(f"v_add_f32 v{t+1}, 1.0, v{t+1}")
        a(f"v_rcp_f32 v{t}, v{t}"); a(f"v_rcp_f32 v{t+1}, v{t+1}")
    for i in range(0, 16, 2):
        y = FB + i; t = ACC + 2*i
        a(f"v_mul_f32 v{y}, v{y}, v{t}"); a(f"v_mul_f32 v{y+1}, v{y+1}, v{t+1}")
        a(f"v_cvt_pk_bf16_f32 v{FB+16+i//2}, v{y}, v{y+1}")
    for q in range(4): a(f"ds_write_b64 v5, v[{FB+16+2*q}:{FB+17+2*q}] offset:{16*q}")
    a("s_waitcnt lgkmcnt(0)"); a("s_barrier")
    a(f"ds_read_b128 v[8:11], v154 offset:{K2G_TILE}"); a(f"ds_read_b128 v[12:15], v154 offset:{K2G_TILE+32*144}")
    a("s_waitcnt vmcnt(0)")
    stamp(a, 4, "k2g")
    for i in range(8):
        a(f"v_lshlrev_b32 v{16+2*i}, 16, v{SV+i}"); a(f"v_and_b32 v{17+2*i}, 0xffff0000, v{SV+i}")
        a(f"v_lshlrev_b32 v{32+2*i}, 16, v{XV+i}"); a(f"v_and_b32 v{33+2*i}, 0xffff0000, v{XV+i}")
    a("s_waitcnt lgkmcnt(0)")
    for i in range(8):
        a(f"v_lshlrev_b32 v{48+2*i}, 16, v{8+i}"); a(f"v_and_b32 v{49+2*i}, 0xffff0000, v{8+i}")
    for i in range(8): a(f"v_pk_mul_f32 {P(16+2*i)}, {P(16+2*i)}, {P(48+2*i)}")
    for i in range(8): a(f"v_cvt_pk_bf16_f32 v{8+i}, v{16+2*i}, v{17+2*i}")
    for i in range(8):
        a(f"v_lshlrev_b32 v{16+2*i}, 16, v{8+i}"); a(f"v_and_b32 v{17+2*i}, 0xffff0000, v{8+i}")
    for i in range(8): a(f"v_pk_add_f32 {P(16+2*i)}, {P(16+2*i)}, {P(32+2*i)}")
    for i in range(8): a(f"v_cvt_pk_bf16_f32 v{8+i}, v{16+2*i}, v{17+2*i}")
    a("buffer_store_dwordx4 v[8:11], v152, s[40:43], s58 offen")
    a("buffer_store_dwordx4 v[12:15], v152, s[40:43], s59 offen")
    stamp(a, 5, "k2g")
    stamp_flush(a, 6, "k2g", 5)
    a("s_endpgm")
```

```python
import sys, os, re
from gen_n0 import *
from gen_n1 import *
from gen_n2 import *
from gen_k23 import k2_col_role, K2_COL_LDS

HDR = open("cdna_kernels/" + KN + ".s.ref").read().split("; Override launch geometry")[0]

def kstart(a, name):
    a.raw(f".globl {name}\n.p2align 8\n.type {name},@function")
    a.label(name)

def build():
    a = Asm()
    k0, k1, k2 = "k0_kernel", "k1_kernel", "k2_kernel"
    lds1 = max(K2_COL_LDS, K1G_LDS)
    lds2 = max(K2R_LDS, K2_GEMM_LDS)
    a.raw(HDR + f"; @launch kernel={k0} grid=(256,1,1) block=(512,1,1) lds={K0_LDS}\n"
              + f"; @launch kernel={k1} grid=(512,1,1) block=(256,1,1) lds={lds1}\n"
              + f"; @launch kernel={k2} grid=(512,1,1) block=(256,1,1) lds={lds2}\n"
              + '.amdgcn_target "amdgcn-amd-amdhsa--gfx950"\n.text')
    kstart(a, k0)
    a("s_cmp_ge_u32 s2, 256"); a("s_cbranch_scc1 L_k0_exit")
    k0_kernel(a)
    a.label("L_k0_exit")
    a("s_endpgm")
    kstart(a, k1)
    a("s_cmp_ge_u32 s2, 512"); a("s_cbranch_scc1 L_k1_exit")
    a("s_cmp_ge_u32 s2, 256"); a("s_cbranch_scc1 L_k1_col")
    a("s_and_b32 s70, s2, 3"); a("s_lshl_b32 s70, s70, 2"); a("s_lshr_b32 s3, s2, 3"); a("s_and_b32 s3, s3, 3"); a("s_add_u32 s70, s70, s3")
    a("s_and_b32 s71, s2, 4"); a("s_lshl_b32 s71, s71, 1"); a("s_lshr_b32 s3, s2, 5"); a("s_add_u32 s71, s71, s3")
    a("s_cmp_ge_u32 s71, 15"); a("s_cbranch_scc1 L_k1_exit")
    if os.environ.get("NOGEMM"): a("s_endpgm")
    k1_gemm_role(a)
    a.label("L_k1_col")
    if os.environ.get("NOCOL"): a("s_endpgm")
    a("s_sub_u32 s2, s2, 256")
    NPK[0] = os.environ.get('NPK', '1') == '1'
    k2_col_role(a)
    NPK[0] = False
    a.label("L_k1_exit")
    a("s_endpgm")
    kstart(a, k2)
    a("s_cmp_ge_u32 s2, 512"); a("s_cbranch_scc1 L_k2_exit")
    a("s_cmp_ge_u32 s2, 256"); a("s_cbranch_scc1 L_k2_gemm")
    NPK[0] = os.environ.get('NPK', '1') == '1'
    k2_row_role(a)
    NPK[0] = False
    a.label("L_k2_gemm")
    a("s_sub_u32 s2, s2, 256")
    k2_gemm_role(a)
    a.label("L_k2_exit")
    a("s_endpgm")
    txt = a.render()
    wt0 = os.environ.get("WT0", "1")
    i1 = txt.index("k1_kernel:")
    t0, t1 = txt[:i1], txt[i1:]
    if wt0 == "1": t0 = re.sub(r"(buffer_store_dword\S* .*offen.*)", r"\1 sc0 sc1", t0)
    elif wt0 == "2": t0 = re.sub(r"(buffer_store_dword\S* .*offen.*)", r"\1 nt", t0)
    t1 = re.sub(r"(buffer_store_dword\S* .*offen.*)", r"\1 sc0 sc1", t1)
    txt = t0 + t1
    txt += twiddle_table()
    txt += '.section .rodata,"a"\n'
    for nm, vg in ((k0, K0_VGPR), (k1, K1_VGPR), (k2, K2_VGPR)):
        txt += ".p2align 6\n" + kernel_desc(nm, vg)
    return txt

if __name__ == "__main__":
    out = sys.argv[1] if len(sys.argv) > 1 else "cdna_kernels/" + KN + ".s"
    open(out, "w").write(build())
```

```python
import math, struct
from asmgen import *

KN = "recurrent_scan__spectral_gfnet__glu_gated_geglu__prompt"

CSTR = 16384 + 256
RS = 16384 + 256
WS_Y1T = 0x000000; SZ_Y1T = 256*RS
WS_Y2T = 0x500000; SZ_Y2T = 256*CSTR
WS_H   = 0xA00000; SZ_H = 86*64*1024
WS_WD  = 0x1000000; SZ_WD = 86*16*1024
WS_WT  = 0x1200000; SZ_WT = 257*2048*4
WS_G   = 0x1500000; SZ_G = 2048*512*2

def f2u(x): return struct.unpack("<I", struct.pack("<f", x))[0]
def fhex(x): return "0x%08x" % f2u(x)

def srd_from_ptr(a, sd, sp, nbytes, off=0):
    if off:
        a(f"s_add_u32 s{sd}, s{sp}, 0x{off:x}")
        a(f"s_addc_u32 s{sd+1}, s{sp+1}, 0")
        a(f"s_and_b32 s{sd+1}, s{sd+1}, 0xffff")
    else:
        a(f"s_mov_b32 s{sd}, s{sp}")
        a(f"s_and_b32 s{sd+1}, s{sp+1}, 0xffff")
    a(f"s_mov_b32 s{sd+2}, 0x{nbytes:x}")
    a(f"s_mov_b32 s{sd+3}, 0x00020000")

def srd_table(a, sd, lbl):
    a(f"s_getpc_b64 s[{sd}:{sd+1}]")
    a.raw(f"{lbl}:")
    a(f"s_add_u32 s{sd}, s{sd}, TWTAB-{lbl}")
    a(f"s_addc_u32 s{sd+1}, s{sd+1}, 0")
    a(f"s_and_b32 s{sd+1}, s{sd+1}, 0xffff")
    a(f"s_mov_b32 s{sd+2}, {TAB_SIZE}")
    a(f"s_mov_b32 s{sd+3}, 0x00020000")

def P(i): return f"v[{i}:{i+1}]"

NPK = [False]
def cadd(a, d, x, y):
    if NPK[0]:
        a(f"v_add_f32 v{d}, v{x}, v{y}"); a(f"v_add_f32 v{d+1}, v{x+1}, v{y+1}")
    else: a(f"v_pk_add_f32 {P(d)}, {P(x)}, {P(y)}")
def csub(a, d, x, y):
    if NPK[0]:
        a(f"v_sub_f32 v{d}, v{x}, v{y}"); a(f"v_sub_f32 v{d+1}, v{x+1}, v{y+1}")
    else: a(f"v_pk_add_f32 {P(d)}, {P(x)}, {P(y)} neg_lo:[0,1] neg_hi:[0,1]")
def cadd_mi(a, d, x, y):
    if NPK[0]:
        assert d != y
        a(f"v_add_f32 v{d}, v{x}, v{y+1}"); a(f"v_sub_f32 v{d+1}, v{x+1}, v{y}")
    else: a(f"v_pk_add_f32 {P(d)}, {P(x)}, {P(y)} op_sel:[0,1] op_sel_hi:[1,0] neg_hi:[0,1]")
def cadd_pi(a, d, x, y):
    if NPK[0]:
        assert d != y
        a(f"v_sub_f32 v{d}, v{x}, v{y+1}"); a(f"v_add_f32 v{d+1}, v{x+1}, v{y}")
    else: a(f"v_pk_add_f32 {P(d)}, {P(x)}, {P(y)} op_sel:[0,1] op_sel_hi:[1,0] neg_lo:[0,1]")
def cmul(a, d, x, w, conj=False):
    assert d != x
    if NPK[0]:
        a(f"v_mul_f32 v{d}, v{x}, v{w}"); a(f"v_mul_f32 v{d+1}, v{x+1}, v{w}")
        if not conj:
            a(f"v_fma_f32 v{d}, -v{x+1}, v{w+1}, v{d}"); a(f"v_fmac_f32 v{d+1}, v{x}, v{w+1}")
        else:
            a(f"v_fmac_f32 v{d}, v{x+1}, v{w+1}"); a(f"v_fma_f32 v{d+1}, -v{x}, v{w+1}, v{d+1}")
        return
    a(f"v_pk_mul_f32 {P(d)}, {P(x)}, {P(w)} op_sel:[0,0] op_sel_hi:[1,0]")
    if not conj:
        a(f"v_pk_fma_f32 {P(d)}, {P(x)}, {P(w)}, {P(d)} op_sel:[1,1,0] op_sel_hi:[0,1,1] neg_lo:[1,0,0]")
    else:
        a(f"v_pk_fma_f32 {P(d)}, {P(x)}, {P(w)}, {P(d)} op_sel:[1,1,0] op_sel_hi:[0,1,1] neg_hi:[1,0,0]")
def cscale(a, d, x, sR, neg=False):
    if NPK[0]:
        if neg:
            a(f"v_mul_f32 v{d}, -v{x}, s{sR}"); a(f"v_mul_f32 v{d+1}, -v{x+1}, s{sR}")
        else:
            a(f"v_mul_f32 v{d}, s{sR}, v{x}"); a(f"v_mul_f32 v{d+1}, s{sR}, v{x+1}")
    else:
        a(f"v_pk_mul_f32 {P(d)}, {P(x)}, s[{sR}:{sR+1}]" + (" neg_lo:[1,0] neg_hi:[1,0]" if neg else ""))

def bfly8(a, A, B, sR, inv=False):
    mi = cadd_pi if inv else cadd_mi
    pi_ = cadd_mi if inv else cadd_pi
    for j in range(4):
        cadd(a, B[j], A[j], A[j+4])
        csub(a, B[j+4], A[j], A[j+4])
    mi(a, A[0], B[5], B[5])
    cscale(a, B[5], A[0], sR)
    pi_(a, A[1], B[7], B[7])
    cscale(a, B[7], A[1], sR, neg=True)
    cadd(a, A[0], B[0], B[2]); csub(a, A[1], B[0], B[2])
    cadd(a, A[2], B[1], B[3]); csub(a, A[3], B[1], B[3])
    mi(a, A[4], B[4], B[6]); pi_(a, A[5], B[4], B[6])
    cadd(a, A[6], B[5], B[7]); csub(a, A[7], B[5], B[7])
    cadd(a, B[0], A[0], A[2]); csub(a, B[4], A[0], A[2])
    mi(a, B[2], A[1], A[3]); pi_(a, B[6], A[1], A[3])
    cadd(a, B[1], A[4], A[6]); csub(a, B[5], A[4], A[6])
    mi(a, B[3], A[5], A[7]); pi_(a, B[7], A[5], A[7])

def bfly4(a, A, B, inv=False):
    mi = cadd_pi if inv else cadd_mi
    pi_ = cadd_mi if inv else cadd_pi
    cadd(a, B[0], A[0], A[2]); csub(a, B[1], A[0], A[2])
    cadd(a, B[2], A[1], A[3]); csub(a, B[3], A[1], A[3])
    cadd(a, A[0], B[0], B[2]); csub(a, A[2], B[0], B[2])
    mi(a, A[1], B[1], B[3]); pi_(a, A[3], B[1], B[3])

def wave_sum(a, r, sdst):
    for sh in (1, 2, 4, 8):
        a(f"v_add_f32_dpp v{r}, v{r}, v{r} row_shr:{sh} row_mask:0xf bank_mask:0xf bound_ctrl:0")
    a(f"v_add_f32_dpp v{r}, v{r}, v{r} row_bcast:15 row_mask:0xa bank_mask:0xf")
    a(f"v_add_f32_dpp v{r}, v{r}, v{r} row_bcast:31 row_mask:0xc bank_mask:0xf")
    a(f"v_readlane_b32 s{sdst}, v{r}, 63")

T_R1 = 0; T_R2 = 4096; T_C1 = 4608; T_C2 = 20992; T_C3 = 23040; TAB_SIZE = 23296
def twiddle_table():
    out = [".p2align 8", ".type TWTAB,@object", "TWTAB:"]
    def w(N, j):
        th = 2*math.pi*(j % N)/N
        return f"{fhex(math.cos(th))}, {fhex(-math.sin(th))}"
    for (N, cnt) in ((512, 64), (64, 8), (2048, 256), (256, 32), (32, 4)):
        for q in range(4):
            for l in range(cnt):
                out.append(f".long {w(N, l*2*q)}, {w(N, l*(2*q+1))}")
    out.append(f".size TWTAB, {TAB_SIZE}")
    return "\n".join(out) + "\n"

def load_tw(a, dst, vaddr, srd, base, cnt):
    for q in range(4):
        off = base + q*cnt*16
        if off < 4096:
            a(f"buffer_load_dwordx4 v[{dst+4*q}:{dst+4*q+3}], v{vaddr}, s[{srd}:{srd+3}], 0 offen offset:{off}")
        else:
            a(f"s_mov_b32 s3, {off}")
            a(f"buffer_load_dwordx4 v[{dst+4*q}:{dst+4*q+3}], v{vaddr}, s[{srd}:{srd+3}], s3 offen")

def kernel_desc(name, vgpr, sgpr=102):
    acc = (vgpr + 3)//4*4
    return f""".amdhsa_kernel {name}
  .amdhsa_next_free_vgpr {vgpr}
  .amdhsa_next_free_sgpr {sgpr}
  .amdhsa_accum_offset {acc}
  .amdhsa_group_segment_fixed_size 0
  .amdhsa_kernarg_size 80
  .amdhsa_user_sgpr_count 2
  .amdhsa_user_sgpr_kernarg_segment_ptr 1
  .amdhsa_system_sgpr_workgroup_id_x 1
.end_amdhsa_kernel
"""

def kcol(t, r):
    k0 = t >> 5; k1 = (t >> 2) & 7; k2h = t & 3
    k2l = r >> 2; k3 = r & 3
    return k0 + 8*k1 + 64*(2*k2h + k2l) + 512*k3

import os
STAMP = os.environ.get("STAMP", "")
RTALL = os.environ.get("RTALL", "")
def _rtsel(kern):
    parts = RTALL.split(";")
    return [int(x) for x in parts[0 if kern == "k1" else 1].split(",")]
def stamp(a, i, kern):
    if RTALL and kern in ("k1", "k2"):
        sel = _rtsel(kern)
        if i in sel: a(f"s_memrealtime s[{80+2*sel.index(i)}:{81+2*sel.index(i)}]")
        return
    if STAMP == kern: a(f"s_memtime s[{80+2*i}:{81+2*i}]")
_sfc = [0]
def stamp_flush(a, n, kern, wg):
    if RTALL and kern in ("k1", "k2"):
        sel = _rtsel(kern); m = len(sel)
        a("s_waitcnt vmcnt(0) lgkmcnt(0)")
        a(f"s_memrealtime s[{80+2*m}:{81+2*m}]")
        a("s_load_dwordx2 s[76:77], s[0:1], 64")
        a("s_waitcnt lgkmcnt(0)")
        srd_from_ptr(a, 76, 76, 65536)
        a("v_lshrrev_b32 v1, 6, v0"); a("v_lshlrev_b32 v1, 5, v1")
        a("s_lshl_b32 s3, s2, 7")
        if kern == "k2": a("s_add_u32 s3, s3, 32768")
        for i in range(m+1):
            a(f"v_mov_b32 v2, s{80+2*i}")
            a(f"buffer_store_dword v2, v1, s[76:79], s3 offen offset:{4*i}")
        return
    if STAMP != kern: return
    a("s_waitcnt vmcnt(0) lgkmcnt(0)")
    a(f"s_memtime s[{80+2*n}:{81+2*n}]")
    a("s_load_dwordx2 s[76:77], s[0:1], 64")
    a("s_waitcnt lgkmcnt(0)")
    a(f"s_cmp_eq_u32 s2, {wg}")
    _sfc[0] += 1
    a(f"s_cbranch_scc0 L_nostamp_{kern}{_sfc[0]}")
    srd_from_ptr(a, 76, 76, 512)
    a("v_lshrrev_b32 v1, 6, v0"); a("v_and_b32 v1, 7, v1"); a("v_lshlrev_b32 v1, 6, v1")
    for i in range(n+1):
        a(f"s_sub_u32 s3, s{80+2*i}, s80")
        a("v_mov_b32 v2, s3")
        a(f"buffer_store_dword v2, v1, s[76:79], 0 offen offset:{4*i}")
    a.label(f"L_nostamp_{kern}{_sfc[0]}")
```

```python
from gen_common import *
R2 = 1.0/math.sqrt(2.0)

def xcd_pair(a, dst, src):
    a(f"s_lshr_b32 s3, s{src}, 3"); a("s_and_b32 s3, s3, 1")
    a(f"s_and_b32 s{dst+1}, s{src}, 7"); a(f"s_lshl_b32 s{dst+1}, s{dst+1}, 1"); a(f"s_or_b32 s3, s3, s{dst+1}")
    a(f"s_and_b32 s{dst+1}, s{src}, 0xf0"); a(f"s_or_b32 s{dst}, s3, s{dst+1}")

K2_X1F = 0; K2_XW = 16384; K2_X1I = 36864; K2_COL_LDS = 53248

def k2_col_role(a, cont=None):
    A = [8+2*i for i in range(8)]; B = [24+2*i for i in range(8)]
    TW1 = [40+2*i for i in range(8)]; TW2 = [56+2*i for i in range(8)]; TW3 = [72+2*i for i in range(8)]
    WW = 88
    W2 = 112
    stamp(a, 0, "k2")
    a("s_load_dwordx2 s[12:13], s[0:1], 72")
    xcd_pair(a, 14, 2)
    if cont is not None: a("s_xor_b32 s14, s14, 255")
    srd_table(a, 20, "L_k2_pc")
    a(f"s_mov_b32 s48, {fhex(R2)}"); a(f"s_mov_b32 s49, {fhex(R2)}")
    a("v_lshlrev_b32 v3, 3, v0")
    a("v_lshlrev_b32 v4, 4, v0")
    a("v_and_b32 v5, 31, v0"); a("v_lshlrev_b32 v6, 4, v5")
    a("v_and_b32 v101, 3, v0"); a("v_lshlrev_b32 v7, 4, v101")
    load_tw(a, TW1[0], 4, 20, T_C1, 256)
    a("v_lshrrev_b32 v96, 3, v0"); a(f"v_mul_u32_u24 v96, {RS}, v96"); a("v_and_b32 v97, 7, v0"); a("v_lshlrev_b32 v97, 3, v97"); a("v_add_u32 v96, v96, v97")
    a("s_waitcnt lgkmcnt(0)")
    stamp(a, 1, "k2")
    srd_from_ptr(a, 24, 12, SZ_Y1T, WS_Y1T)
    a("s_lshl_b32 s50, s14, 6")
    for j in range(8):
        a(f"buffer_load_dwordx2 {P(A[j])}, v96, s[24:27], s50 offen")
        if j < 7: a(f"s_add_u32 s50, s50, {32*RS}")
    FDEF = os.environ.get("FDEF") == "1"
    def late_loads():
        load_tw(a, TW2[0], 6, 20, T_C2, 32)
        load_tw(a, TW3[0], 7, 20, T_C3, 4)
        a("v_lshlrev_b32 v107, 5, v0")
        a(f"buffer_load_dwordx4 v[{WW}:{WW+3}], v107, s[36:39], s51 offen")
        a(f"buffer_load_dwordx4 v[{WW+4}:{WW+7}], v107, s[36:39], s51 offen offset:16")
        if FDEF:
            a("s_cmp_lg_u32 s14, 0"); a("s_cbranch_scc1 L_k2_now2")
        a("s_mov_b32 s52, 0x200000")
        a(f"buffer_load_dwordx4 v[{W2}:{W2+3}], v107, s[36:39], s52 offen")
        a(f"buffer_load_dwordx4 v[{W2+4}:{W2+7}], v107, s[36:39], s52 offen offset:16")
        if FDEF: a.label("L_k2_now2")
        a("v_add_u32 v6, 0x1000, v3"); a("v_add_u32 v7, 0x2000, v3"); a("v_add_u32 v105, 0x3000, v3")
    srd_from_ptr(a, 28, 12, SZ_Y2T, WS_Y2T)
    srd_from_ptr(a, 36, 12, SZ_WT, WS_WT)
    a(f"s_mul_i32 s50, s14, {CSTR}")
    AV = [3, 6, 7, 105]
    a("s_lshl_b32 s51, s14, 13")
    if not FDEF: late_loads()
    a("v_lshrrev_b32 v106, 5, v0")
    a("v_lshlrev_b32 v96, 8, v106"); a("v_add_u32 v96, v96, v5"); a("v_lshlrev_b32 v96, 3, v96")
    a("v_lshrrev_b32 v97, 6, v0"); a("v_mul_u32_u24 v97, 5120, v97"); a(f"v_add_u32 v97, {K2_XW}, v97")
    a("v_and_b32 v98, 1, v106"); a("v_mul_u32_u24 v98, 288, v98")
    a("v_add_u32 v99, v98, v5"); a("v_lshlrev_b32 v99, 3, v99"); a("v_add_u32 v99, v99, v97")
    a("v_lshrrev_b32 v100, 2, v5"); a("v_mul_u32_u24 v100, 36, v100")
    a("v_add_u32 v100, v100, v101"); a("v_add_u32 v100, v100, v98"); a("v_lshlrev_b32 v100, 3, v100"); a("v_add_u32 v100, v100, v97")
    a("v_and_b32 v102, 63, v0"); a("v_lshrrev_b32 v102, 2, v102"); a("v_mul_u32_u24 v102, 20, v102")
    a("v_mul_u32_u24 v103, 5, v101"); a("v_add_u32 v103, v103, v102"); a("v_lshlrev_b32 v103, 4, v103"); a("v_add_u32 v103, v103, v97")
    a("v_add_u32 v104, v102, v101"); a("v_lshlrev_b32 v104, 4, v104"); a("v_add_u32 v104, v104, v97")
    stamp(a, 2, "k2")
    a(f"s_waitcnt vmcnt({0 if FDEF else 12})")
    stamp(a, 3, "k2")
    if FDEF: late_loads()
    bfly8(a, A, B, 48)
    for k in range(1, 8): cmul(a, A[k], B[k], TW1[k])
    a(f"ds_write_b64 v3, {P(B[0])} offset:{K2_X1F}")
    for k in range(1, 8): a(f"ds_write_b64 v3, {P(A[k])} offset:{K2_X1F+2048*k}")
    a("s_waitcnt lgkmcnt(0)"); a("s_barrier")
    for n2 in range(8): a(f"ds_read_b64 {P(A[n2])}, v96 offset:{K2_X1F+256*n2}")
    stamp(a, 4, "k2")
    a(f"s_waitcnt vmcnt({2 if FDEF else 4}) lgkmcnt(0)")
    stamp(a, 5, "k2")
    bfly8(a, A, B, 48)
    for k in range(1, 8): cmul(a, A[k], B[k], TW2[k])
    a(f"ds_write_b64 v99, {P(B[0])}")
    for k in range(1, 8): a(f"ds_write_b64 v99, {P(A[k])} offset:{288*k}")
    for n1 in range(8): a(f"ds_read_b64 {P(A[n1])}, v100 offset:{32*n1}")
    a("s_waitcnt lgkmcnt(0)")
    bfly8(a, A, B, 48)
    a(f"v_mov_b32 v{A[0]}, v{B[0]}"); a(f"v_mov_b32 v{A[0]+1}, v{B[0]+1}")
    for k in range(1, 8): cmul(a, A[k], B[k], TW3[k])
    for q in range(4): a(f"ds_write_b128 v103, v[{A[2*q]}:{A[2*q]+3}] offset:{16*q}")
    for n0 in range(4): a(f"ds_read_b128 v[{B[2*n0]}:{B[2*n0]+3}], v104 offset:{80*n0}")
    a("s_waitcnt lgkmcnt(0)")
    E = [B[0], B[2], B[4], B[6]]; O = [B[1], B[3], B[5], B[7]]
    bfly4(a, E, A[0:4]); bfly4(a, O, A[4:8])
    Zr = E + O
    PR = [A[0], A[2], A[4], A[6], A[1], A[3], A[5], A[7]]
    a("s_waitcnt vmcnt(0)")
    a("s_cmp_eq_u32 s14, 0")
    a("s_cbranch_scc1 L_k2_special")
    for r in range(8):
        t = 108 + 2*(r & 1)
        a(f"v_lshlrev_b32 v{t}, 16, v{WW+r}"); a(f"v_and_b32 v{t+1}, 0xffff0000, v{WW+r}")
        cmul(a, PR[r], Zr[r], t)
    a.label("L_k2_back")
    stamp(a, 6, "k2")
    bfly4(a, PR[0:4], B[0:4], inv=True); bfly4(a, PR[4:8], B[4:8], inv=True)
    for n0 in range(4): a(f"ds_write_b128 v104, v[{A[2*n0]}:{A[2*n0]+3}] offset:{80*n0}")
    for q in range(4): a(f"ds_read_b128 v[{B[2*q]}:{B[2*q]+3}], v103 offset:{16*q}")
    a("s_waitcnt lgkmcnt(0)")
    a(f"v_mov_b32 v{A[0]}, v{B[0]}"); a(f"v_mov_b32 v{A[0]+1}, v{B[0]+1}")
    for k in range(1, 8): cmul(a, A[k], B[k], TW3[k], conj=True)
    bfly8(a, A, B, 48, inv=True)
    for n1 in range(8): a(f"ds_write_b64 v100, {P(B[n1])} offset:{32*n1}")
    a(f"ds_read_b64 {P(A[0])}, v99")
    for k in range(1, 8): a(f"ds_read_b64 {P(B[k])}, v99 offset:{288*k}")
    a("s_waitcnt lgkmcnt(0)")
    for k in range(1, 8): cmul(a, A[k], B[k], TW2[k], conj=True)
    bfly8(a, A, B, 48, inv=True)
    for n2 in range(8): a(f"ds_write_b64 v96, {P(B[n2])} offset:{K2_X1I+256*n2}")
    a("s_waitcnt lgkmcnt(0)"); a("s_barrier")
    a(f"ds_read_b64 {P(A[0])}, v3 offset:{K2_X1I}")
    for k in range(1, 8): a(f"ds_read_b64 {P(B[k])}, v3 offset:{K2_X1I+2048*k}")
    a("s_waitcnt lgkmcnt(0)")
    for k in range(1, 8): cmul(a, A[k], B[k], TW1[k], conj=True)
    bfly8(a, A, B, 48, inv=True)
    stamp(a, 7, "k2")
    for j in range(8):
        a(f"buffer_store_dwordx2 {P(B[j])}, v{AV[j//2]}, s[28:31], s50 offen offset:{2048*(j&1)}")
    if cont is not None: cont(a)
    else:
        stamp_flush(a, 8, "k2", 5)
        a("s_endpgm")
    a.label("L_k2_special")
    a("v_lshrrev_b32 v108, 2, v0"); a("v_and_b32 v108, 7, v108"); a("v_lshlrev_b32 v108, 3, v108")
    a("v_add_u32 v108, v108, v106"); a("v_lshlrev_b32 v109, 7, v101"); a("v_add_u32 v108, v108, v109")
    a("s_barrier")
    a("v_lshlrev_b32 v109, 4, v108")
    for r in range(8):
        ko = 64*(r >> 2) + 512*(r & 3)
        a(f"v_mov_b32 v120, v{Zr[r]}"); a(f"v_mov_b32 v121, v{Zr[r]+1}"); a(f"v_mov_b32 v122, v{WW+r}"); a(f"v_mov_b32 v123, v{W2+r}")
        a(f"ds_write_b128 v109, v[120:123] offset:{16*ko}")
    a("s_waitcnt lgkmcnt(0)"); a("s_barrier")
    M = 128
    for r in range(8):
        ko = 64*(r >> 2) + 512*(r & 3)
        a(f"v_sub_u32 v109, {2048-ko}, v108"); a("v_and_b32 v109, 2047, v109"); a("v_lshlrev_b32 v109, 4, v109")
        a(f"ds_read_b128 v[{M+4*r}:{M+4*r+3}], v109")
    a("s_waitcnt lgkmcnt(0)"); a("s_barrier")
    for r in range(8):
        m = M + 4*r
        a(f"v_lshlrev_b32 v108, 16, v{WW+r}"); a(f"v_and_b32 v109, 0xffff0000, v{WW+r}")
        a(f"v_lshlrev_b32 v110, 16, v{W2+r}"); a(f"v_and_b32 v111, 0xffff0000, v{W2+r}")
        a(f"v_lshlrev_b32 v120, 16, v{m+2}"); a(f"v_and_b32 v121, 0xffff0000, v{m+2}")
        a(f"v_lshlrev_b32 v122, 16, v{m+3}"); a(f"v_and_b32 v123, 0xffff0000, v{m+3}")
        a("v_pk_add_f32 v[108:109], v[108:109], v[120:121] neg_hi:[0,1]")
        a("v_pk_add_f32 v[110:111], v[110:111], v[122:123] neg_hi:[0,1]")
        cadd(a, 120, 108, 110); csub(a, 122, 108, 110)
        for q in range(4): a(f"v_mul_f32 v{120+q}, 0.25, v{120+q}")
        cmul(a, PR[r], Zr[r], 120)
        cmul(a, 124, 122, m, conj=True)
        cadd(a, PR[r], PR[r], 124)
    a("s_branch L_k2_back")

RQ = 5152
K3_LDS = 4*RQ
def k3_role(a):
    A = [8+2*i for i in range(8)]; B = [24+2*i for i in range(8)]
    TW1 = [40+2*i for i in range(8)]; TW2 = [56+2*i for i in range(8)]
    Y = 72
    XV = 104; GV = 112
    stamp(a, 0, "k3")
    a("s_load_dwordx2 s[4:5], s[0:1], 0")
    a("s_load_dwordx2 s[6:7], s[0:1], 56")
    a("s_load_dwordx2 s[12:13], s[0:1], 72")
    xcd_pair(a, 14, 2)
    srd_table(a, 20, "L_k3_pc")
    a(f"s_mov_b32 s48, {fhex(R2)}"); a(f"s_mov_b32 s49, {fhex(R2)}")
    a("v_and_b32 v1, 63, v0")
    a("v_lshrrev_b32 v2, 6, v0")
    a("v_readfirstlane_b32 s50, v2")
    a("v_lshrrev_b32 v5, 3, v1"); a("v_and_b32 v6, 7, v1")
    a("v_lshlrev_b32 v3, 4, v1"); a("v_lshlrev_b32 v4, 4, v6")
    load_tw(a, TW2[0], 4, 20, T_R2, 8)
    load_tw(a, TW1[0], 3, 20, T_R1, 64)
    a("s_lshl_b32 s51, s14, 3"); a("s_lshl_b32 s52, s50, 1"); a("s_add_u32 s51, s51, s52")
    a("v_lshrrev_b32 v120, 2, v0"); a("v_and_b32 v121, 3, v0")
    a(f"v_mul_u32_u24 v122, {CSTR}, v120"); a("v_lshlrev_b32 v123, 4, v121"); a("v_add_u32 v122, v122, v123")
    a("s_waitcnt lgkmcnt(0)")
    stamp(a, 1, "k3")
    srd_from_ptr(a, 28, 12, SZ_Y2T, WS_Y2T)
    a("s_lshl_b32 s53, s14, 6")
    for i in range(4):
        a(f"buffer_load_dwordx4 v[{Y+4*i}:{Y+4*i+3}], v122, s[28:31], s53 offen")
        if i < 3: a(f"s_add_u32 s53, s53, {64*CSTR}")
    srd_from_ptr(a, 16, 4, 2048*1024)
    srd_from_ptr(a, 24, 6, 2048*1024)
    srd_from_ptr(a, 32, 12, SZ_G, WS_G)
    a("s_lshl_b32 s55, s51, 10")
    a(f"buffer_load_dwordx4 v[{XV}:{XV+3}], v3, s[16:19], s55 offen")
    a(f"buffer_load_dwordx4 v[{XV+4}:{XV+7}], v3, s[16:19], s55 offen offset:1024")
    a(f"buffer_load_dwordx4 v[{GV}:{GV+3}], v3, s[32:35], s55 offen")
    a(f"buffer_load_dwordx4 v[{GV+4}:{GV+7}], v3, s[32:35], s55 offen offset:1024")
    a("v_lshrrev_b32 v123, 3, v120"); a("v_add_u32 v123, v123, v120"); a("v_lshlrev_b32 v123, 4, v123")
    a(f"v_mul_u32_u24 v124, {RQ}, v121"); a("v_add_u32 v123, v123, v124")
    a(f"s_mul_i32 s61, s50, {RQ}")
    a("v_mul_u32_u24 v124, 9, v6"); a("v_add_u32 v125, v124, v5"); a("v_lshlrev_b32 v125, 4, v125"); a("v_add_u32 v125, s61, v125")
    a("v_lshlrev_b32 v7, 3, v6"); a("v_add_u32 v7, v7, v5")
    a("v_sub_u32 v126, 64, v7"); a("v_lshrrev_b32 v127, 3, v126"); a("v_add_u32 v126, v126, v127"); a("v_lshlrev_b32 v126, 4, v126"); a("v_add_u32 v126, s61, v126")
    a("v_sub_u32 v127, 256, v7"); a("v_and_b32 v127, 255, v127"); a("v_lshrrev_b32 v128, 3, v127"); a("v_add_u32 v127, v127, v128"); a("v_lshlrev_b32 v127, 4, v127"); a("v_add_u32 v127, s61, v127")
    a("v_lshlrev_b32 v129, 3, v1"); a("v_add_u32 v129, s61, v129")
    a("v_mul_u32_u24 v130, 72, v5"); a("v_add_u32 v131, v130, v6"); a("v_lshlrev_b32 v131, 3, v131"); a("v_add_u32 v131, s61, v131")
    a("v_add_u32 v132, v124, v130"); a("v_lshlrev_b32 v132, 3, v132"); a("v_add_u32 v132, s61, v132")
    a("v_lshlrev_b32 v133, 4, v5"); a("v_add_u32 v133, v133, v129")
    a("v_mul_u32_u24 v134, 80, v1"); a("v_add_u32 v134, s61, v134")
    stamp(a, 2, "k3")
    a("s_waitcnt vmcnt(4)")
    stamp(a, 3, "k3")
    for i in range(4): a(f"ds_write_b128 v123, v[{Y+4*i}:{Y+4*i+3}] offset:{72*16*i}")
    a("s_waitcnt lgkmcnt(0)"); a("s_barrier")
    for k2 in range(4): a(f"ds_read_b128 v[{Y+4*k2}:{Y+4*k2+3}], v125 offset:{72*16*k2}")
    a(f"ds_read_b128 v[{Y+16}:{Y+19}], v127")
    for k2 in range(5, 8): a(f"ds_read_b128 v[{Y+4*k2}:{Y+4*k2+3}], v126 offset:{72*16*(7-k2)}")
    a("s_waitcnt lgkmcnt(0)")
    stamp(a, 4, "k3")
    for k2 in range(4):
        y = Y + 4*k2
        cadd_pi(a, A[k2], y, y+2)
    for k2 in range(4, 8):
        y = Y + 4*k2
        a(f"v_pk_add_f32 {P(A[k2])}, {P(y)}, {P(y+2)} op_sel:[0,1] op_sel_hi:[1,0] neg_hi:[1,0]")
    a("v_cmp_eq_u32 vcc, 0, v1")
    a(f"v_cndmask_b32 v{A[0]}, v{A[0]}, v{Y}, vcc"); a(f"v_cndmask_b32 v{A[0]+1}, v{A[0]+1}, v{Y+2}, vcc")
    a(f"v_cndmask_b32 v{A[4]}, v{A[4]}, v{Y+17}, vcc"); a(f"v_cndmask_b32 v{A[4]+1}, v{A[4]+1}, v{Y+19}, vcc")
    bfly8(a, A, B, 48, inv=True)
    for n0 in range(8): a(f"ds_write_b64 v132, {P(B[n0])} offset:{8*n0}")
    a(f"ds_read_b64 {P(A[0])}, v131")
    for k in range(1, 8): a(f"ds_read_b64 {P(B[k])}, v131 offset:{72*k}")
    a("s_waitcnt lgkmcnt(0)")
    for k in range(1, 8): cmul(a, A[k], B[k], TW2[k], conj=True)
    bfly8(a, A, B, 48, inv=True)
    for n1 in range(8): a(f"ds_write_b64 v131, {P(B[n1])} offset:{64*n1}")
    a(f"ds_read_b64 {P(A[0])}, v129")
    for k in range(1, 8): a(f"ds_read_b64 {P(B[k])}, v129 offset:{576*k}")
    a("s_waitcnt lgkmcnt(0)")
    for k in range(1, 8): cmul(a, A[k], B[k], TW1[k], conj=True)
    bfly8(a, A, B, 48, inv=True)
    for j in range(8): a(f"ds_write_b64 v133, {P(B[j])} offset:{640*j}")
    for q in range(4): a(f"ds_read_b128 v[{A[2*q]}:{A[2*q]+3}], v134 offset:{16*q}")
    sc = 1.0/(2*2048*512)
    a(f"s_mov_b32 s46, {fhex(sc)}"); a(f"s_mov_b32 s47, {fhex(sc)}")
    a("s_waitcnt vmcnt(0) lgkmcnt(0)")
    stamp(a, 5, "k3")
    for e in range(8): a(f"v_pk_mul_f32 {P(A[e])}, {P(A[e])}, s[46:47]")
    OUT = 120
    for row in range(2):
        for q in range(4):
            e0, e1 = A[2*q]+row, A[2*q+1]+row
            t = 40 + 8*(q & 1)
            a(f"v_cvt_pk_bf16_f32 v{t}, v{e0}, v{e1}")
            a(f"v_lshlrev_b32 v{t+2}, 16, v{t}"); a(f"v_and_b32 v{t+3}, 0xffff0000, v{t}")
            g = GV + 4*row + q; x = XV + 4*row + q
            a(f"v_lshlrev_b32 v{t+4}, 16, v{g}"); a(f"v_and_b32 v{t+5}, 0xffff0000, v{g}")
            a(f"v_pk_mul_f32 {P(t+2)}, {P(t+2)}, {P(t+4)}")
            a(f"v_cvt_pk_bf16_f32 v{t}, v{t+2}, v{t+3}")
            a(f"v_lshlrev_b32 v{t+2}, 16, v{t}"); a(f"v_and_b32 v{t+3}, 0xffff0000, v{t}")
            a(f"v_lshlrev_b32 v{t+4}, 16, v{x}"); a(f"v_and_b32 v{t+5}, 0xffff0000, v{x}")
            a(f"v_pk_add_f32 {P(t+2)}, {P(t+2)}, {P(t+4)}")
            a(f"v_cvt_pk_bf16_f32 v{OUT+4*row+q}, v{t+2}, v{t+3}")
    stamp(a, 6, "k3")
    a(f"buffer_store_dwordx4 v[{OUT}:{OUT+3}], v3, s[24:27], s55 offen")
    a(f"buffer_store_dwordx4 v[{OUT+4}:{OUT+7}], v3, s[24:27], s55 offen offset:1024")
    stamp_flush(a, 7, "k3", 5)
    a("s_endpgm")
```

```python
from gen_common import *
from gen_n0 import *
import gen_n1
from gen_n1 import k1_epilogue_unit, C1, C2, HS, NSLOT, ACC, AF, XR, NXR, VWD, VB

SLP = int(os.environ.get('SLP', '4'))
PH = os.environ.get('PH', 'sc0 sc1'); PY = os.environ.get('PY', 'sc0 sc1'); PS = os.environ.get('PS', 'sc0 sc1')
YSTR = 256; LEAD = 30
NORD = os.environ.get('NORD') == '1'
WRING = 18432; NWS = 9
M_LDS = NSLOT*HS
M_VGPR = 208
NS = 22
PD = 8

def g_role(a):
    stamp(a, 0, "k1")
    if os.environ.get("GP0") == "1": a("s_setprio 3")
    a("s_load_dwordx2 s[10:11], s[0:1], 32"); a("s_load_dwordx2 s[12:13], s[0:1], 40")
    a("s_load_dwordx2 s[16:17], s[0:1], 72")
    a("s_load_dwordx2 s[14:15], s[0:1], 48")
    a("s_load_dwordx2 s[4:5], s[0:1], 0")
    a("s_load_dwordx2 s[6:7], s[0:1], 56")
    a("s_and_b32 s70, s2, 3"); a("s_lshl_b32 s70, s70, 2"); a("s_lshr_b32 s3, s2, 3"); a("s_and_b32 s3, s3, 3"); a("s_add_u32 s70, s70, s3")
    a("s_and_b32 s71, s2, 4"); a("s_lshl_b32 s71, s71, 1"); a("s_lshr_b32 s3, s2, 5"); a("s_add_u32 s71, s71, s3")
    a("v_and_b32 v1, 63, v0")
    a("v_lshrrev_b32 v2, 6, v0")
    a("v_readfirstlane_b32 s50, v2")
    a("v_lshlrev_b32 v3, 4, v1")
    for p in range(3):
        a(f"v_add_u32 v{VWD+p}, {p*64}, v1")
        a(f"v_mul_u32_u24 v5, 0x5556, v{VWD+p}"); a("v_lshrrev_b32 v5, 18, v5")
        a(f"v_mul_u32_u24 v6, 12, v5"); a(f"v_sub_u32 v6, v{VWD+p}, v6")
        a(f"v_mul_u32_u24 v5, 2752, v5"); a(f"v_lshl_add_u32 v{VWD+p}, v6, 4, v5")
    a("s_lshr_b32 s55, s50, 1")
    a("s_and_b32 s56, s50, 1")
    a(f"s_mul_i32 s57, s56, {16*2752}")
    a("s_mul_i32 s59, s71, 6"); a("s_min_u32 s59, s59, 80"); a("s_lshl_b32 s60, s59, 5"); a("s_add_u32 s57, s57, s60")
    a("s_mul_i32 s58, s55, 6176"); a("s_mul_i32 s60, s56, 3072"); a("s_add_u32 s58, s58, s60")
    a("s_lshl_b32 s54, s70, 2"); a("s_add_u32 s54, s54, s50")
    a("s_lshl_b32 s53, s54, 15")
    a("v_lshrrev_b32 v5, 4, v1"); a("v_and_b32 v6, 1, v5"); a("v_lshrrev_b32 v5, 1, v5")
    a("v_and_b32 v7, 15, v1"); a("v_lshrrev_b32 v13, 2, v7"); a("v_and_b32 v7, 3, v7")
    a("v_lshlrev_b32 v16, 9, v5"); a("v_lshl_add_u32 v16, v13, 6, v16"); a("v_lshl_add_u32 v16, v6, 5, v16"); a("v_lshl_add_u32 v16, v7, 3, v16")
    a(f"s_mul_i32 s62, s50, {WRING}"); a("v_add_u32 v16, s62, v16")
    a("v_lshl_add_u32 v5, v5, 3, v13"); a("v_mul_u32_u24 v5, 192, v5"); a("v_mul_u32_u24 v6, 6176, v6"); a("v_add_u32 v5, v5, v6")
    a(f"v_lshl_add_u32 v{VB}, v7, 3, v5")
    a(f"v_add_u32 v{VB+1}, {3*HS}, v{VB}")
    a("v_lshrrev_b32 v5, 5, v1"); a("v_lshlrev_b32 v17, 12, v5")
    a("v_bfe_u32 v5, v1, 2, 2"); a("v_lshl_add_u32 v17, v5, 10, v17")
    a("v_bfe_u32 v5, v1, 4, 1"); a("v_lshl_add_u32 v17, v5, 6, v17")
    a("v_and_b32 v5, 3, v1"); a("v_lshl_add_u32 v17, v5, 4, v17")
    a("s_and_b32 s51, s2, 3"); a("s_lshl_b32 s51, s51, 3"); a("s_and_b32 s3, s2, 4"); a("s_add_u32 s51, s51, s3")
    a("s_lshr_b32 s3, s2, 3"); a("s_and_b32 s3, s3, 3"); a("s_add_u32 s51, s51, s3")
    a("s_lshr_b32 s52, s2, 5")
    a("s_mul_i32 s63, s50, 22")
    a("s_lshl_b32 s64, s63, 14"); a("s_lshl_b32 s3, s52, 7"); a("s_add_u32 s64, s64, s3")
    a("s_lshl_b32 s65, s63, 16"); a("s_lshl_b32 s3, s51, 11"); a("s_add_u32 s65, s65, s3")
    a("s_cmp_eq_u32 s55, 0")
    a("s_waitcnt lgkmcnt(0)")
    a("s_cselect_b32 s72, s10, s12"); a("s_cselect_b32 s73, s11, s13")
    a("s_and_b32 s73, s73, 0xffff"); a(f"s_mov_b32 s74, {512*2752}"); a("s_mov_b32 s75, 0x00020000")
    srd_from_ptr(a, 20, 16, SZ_XN, WS_XN)
    srd_from_ptr(a, 76, 16, SZ_H, WS_H)
    srd_from_ptr(a, 24, 14, 1376*1024)
    srd_from_ptr(a, 32, 16, SZ_FLAG, WS_FLAG)
    a("s_cmp_ge_u32 s71, 15"); a("s_cbranch_scc1 L_g_b")
    issued = []
    def w_dma(stage):
        for p in range(3):
            a(f"s_add_u32 m0, s58, {(stage % NSLOT)*HS + p*1024}")
            a(f"buffer_load_dwordx4 v{VWD+p}, s[72:75], s57 offen lds")
            issued.append(("w", stage))
        a(f"s_add_u32 s57, s57, {32*2752}")
    def x_load(j):
        d = XR + 4*(j % NXR)
        a(f"buffer_load_dwordx4 v[{d}:{d+3}], v3, s[20:23], s53 offen offset:{1024*(j&3)}")
        issued.append(("x", j))
        if (j & 3) == 3: a("s_add_u32 s53, s53, 4096")
    def need(tags):
        last = max(i for i, t in enumerate(issued) if t in tags)
        return len(issued) - 1 - last
    w_dma(0); x_load(0); x_load(1)
    w_dma(1); x_load(2); x_load(3)
    pend = [("w", 2), ("x", 4), ("x", 5), ("w", 3), ("x", 6), ("x", 7), ("w", 4), ("w", 5)]
    a("s_lshl_b32 s59, s59, 16"); a("s_lshl_b32 s60, s54, 10"); a("s_add_u32 s59, s59, s60")
    a(f"v_mov_b32 v14, {fhex(C1)}"); a(f"v_mov_b32 v15, {fhex(C1)}")
    a(f"s_mov_b32 s60, {fhex(C2)}"); a(f"s_mov_b32 s61, {fhex(C2)}")
    def rd(stage, kk, u, buf):
        slot = stage % NSLOT
        base = VB + slot//3
        off = (slot % 3)*HS + kk*3072 + u*32
        d = AF + 24*buf + 4*u
        return [f"ds_read_b64_tr_b16 v[{d}:{d+1}], v{base} offset:{off}", f"ds_read_b64_tr_b16 v[{d+2}:{d+3}], v{base} offset:{off+768}"][:1 if NORD else 2]
    def issue_one():
        if not pend: return
        t = pend.pop(0)
        if t[0] == "w": w_dma(t[1])
        else: x_load(t[1])
    NPRE = int(os.environ.get("NPRE", "3"))
    for i in range(NPRE): issue_one()
    if os.environ.get("GP0") == "1": a("s_setprio 0")
    stamp(a, 1, "k1")
    a(f"s_waitcnt vmcnt({need([('w', 0)])})")
    a("s_barrier")
    stamp(a, 2, "k1")
    for u in range(6):
        for t in rd(0, 0, u, 0): a(t)
    for j in range(32):
        st, kk = j >> 1, j & 1
        nst, nkk = (j+1) >> 1, (j+1) & 1
        for u in range(6):
            if u == 0:
                tags = [("x", j)]
                bar = (kk == 1 and st < 15)
                if bar: tags.append(("w", st+1))
                n = need(tags)
                a(f"s_waitcnt vmcnt({n})")
                if bar:
                    a("s_barrier")
                    if st >= 1 and st+5 < 16: pend.append(("w", st+5))
            if NORD: a(f"s_waitcnt lgkmcnt({5 if j < 31 else 5-u})")
            elif j < 31: a("s_waitcnt lgkmcnt(10)")
            else: a(f"s_waitcnt lgkmcnt({10-2*u})")
            x = XR + 4*(j % NXR); d = AF + 24*(j & 1) + 4*u; c = ACC + 16*u
            cs = "0" if j == 0 else f"v[{c}:{c+15}]"
            if j == 31 and u == 5: a("s_barrier")
            a(f"v_mfma_f32_32x32x16_bf16 v[{c}:{c+15}], v[{d}:{d+3}], v[{x}:{x+3}], {cs}")
            if j < 31:
                for t in rd(nst, nkk, u, (j+1) & 1): a(t)
            if u == 5 and j + NXR < 32: pend.append(("x", j+NXR))
            if u in (0, 2, 5): issue_one()
        if j == 15: stamp(a, 3, "k1")
    assert not pend
    stamp(a, 4, "k1")
    def wd_dma(s):
        sl = s % NWS
        a(f"s_add_u32 m0, s62, {sl*2048}")
        a("buffer_load_dwordx4 v17, s[24:27], s64 offen lds")
        a("s_add_u32 s64, s64, 0x2000")
        a(f"s_add_u32 m0, s62, {sl*2048+1024}")
        a("buffer_load_dwordx4 v17, s[24:27], s64 offen lds")
        a("s_add_u32 s64, s64, 0x2000")
    sched = [2, 2, 2, 1, 1, 1]
    LATEWD = os.environ.get("LATEWD") == "1"
    if LATEWD: sched = [0]*6
    ws = 0
    for u in range(6):
        for q in range(sched[u]): wd_dma(ws); ws += 1
        T = 128 + 24*(u % 3)
        k1_epilogue_unit(a, ACC + 16*u, T)
        a(f"buffer_store_dwordx4 v[{T+16}:{T+19}], v3, s[76:79], s59 offen")
        if u < 5: a("s_add_u32 s59, s59, 0x10000")
    a(f"s_mul_i32 s3, s70, {FSTR}"); a("s_lshl_b32 s59, s71, 2"); a("s_add_u32 s59, s59, s3"); a(f"s_add_u32 s59, s59, {FL_H}")
    a("v_mov_b32 v18, 1"); a("v_mov_b32 v19, 0")
    a("s_waitcnt vmcnt(0)")
    a("s_barrier")
    a("s_cmp_lg_u32 s50, 0"); a("s_cbranch_scc1 L_g_nof")
    a("s_mov_b64 exec, 1")
    a("buffer_store_dword v18, v19, s[32:35], s59 offen")
    a("s_mov_b64 exec, -1")
    a.label("L_g_nof")
    stamp(a, 5, "k1")
    if LATEWD:
        for s in range(NWS): wd_dma(s)
    a("s_branch L_g_b2")
    a.label("L_g_b")
    if os.environ.get("E2"): a("s_endpgm")
    for s in range(NWS): wd_dma(s)
    for i in range(int(os.environ.get("IDLE", "2"))): a("s_sleep 127")
    a.label("L_g_b2")
    gemm_b(a)

def gemm_b(a):
    ACC = 8
    HB = 72
    AB = 136
    XV = 152; SV = 160
    VT = 168; VD = 169; VG = 170; VL = 171; VF = 172; VP = 173
    a(f"v_mov_b32 v{VT}, v16"); a(f"v_mov_b32 v{VD}, v17")
    srd_from_ptr(a, 28, 16, SZ_S, WS_S)
    srd_from_ptr(a, 36, 4, 2048*1024)
    srd_from_ptr(a, 40, 6, 2048*1024)
    a(f"v_lshrrev_b32 v{VG}, 3, v0"); a(f"v_and_b32 v4, 7, v0"); a("v_lshlrev_b32 v4, 4, v4")
    a(f"v_lshrrev_b32 v5, 4, v{VG}"); a(f"v_mul_u32_u24 v5, {WRING}, v5"); a(f"v_and_b32 v6, 15, v{VG}"); a("v_mul_u32_u24 v6, 144, v6")
    a(f"v_add3_u32 v{VL}, v5, v6, v4")
    a(f"v_lshl_add_u32 v{VG}, v{VG}, 10, v4")
    a("s_lshl_b32 s58, s51, 16"); a("s_lshl_b32 s3, s52, 7"); a("s_add_u32 s58, s58, s3"); a("s_add_u32 s59, s58, 0x8000")
    a(f"v_and_b32 v{VF}, 15, v1"); a(f"v_lshlrev_b32 v{VF}, 2, v{VF}"); a(f"s_mul_i32 s60, s51, {FSTR}"); a(f"s_add_u32 s60, s60, {FL_S}")
    a("s_lshr_b32 s61, s51, 1"); a(f"s_mul_i32 s61, s61, {FSTR}"); a(f"s_add_u32 s61, s61, {FL_H}")
    a("s_mov_b32 s67, 0")
    a("s_cmp_lg_u32 s50, 0"); a("s_cbranch_scc1 L_g_goh")
    a.label("L_g_pollh")
    a(f"buffer_load_dword v{VP}, v{VF}, s[32:35], s61 offen {PH}")
    a("s_add_u32 s67, s67, 1")
    a("s_waitcnt vmcnt(0)")
    a(f"v_cmp_ne_u32 vcc, 1, v{VP}")
    a("s_and_b32 s3, vcc_lo, 0x7fff")
    a("s_cbranch_scc0 L_g_goh")
    a(f"s_sleep {SLP}")
    a("s_cmp_lt_u32 s67, 0x40000")
    a("s_cbranch_scc1 L_g_pollh")
    a.label("L_g_goh")
    a("s_waitcnt vmcnt(0)")
    a("s_barrier")
    stamp(a, 6, "k1")
    issued = []
    def need(tags):
        idx = [i for i, t in enumerate(issued) if t in tags]
        if not idx: return None
        return len(issued) - 1 - max(idx)
    def h_load(s):
        b = HB + 8*(s % PD)
        a(f"buffer_load_dwordx4 v[{b}:{b+3}], v3, s[76:79], s65 offen"); issued.append(("h0", s))
        a(f"buffer_load_dwordx4 v[{b+4}:{b+7}], v3, s[76:79], s65 offen offset:1024"); issued.append(("h1", s))
        a("s_add_u32 s65, s65, 0x10000")
    a("s_lshl_b32 s68, s52, 7"); a(f"s_add_u32 s68, s68, {1368*1024}")
    def wd_dma(s):
        sl = s % NWS
        a(f"s_add_u32 m0, s62, {sl*2048}")
        if s >= 20: a("s_min_u32 s64, s64, s68")
        a(f"buffer_load_dwordx4 v{VD}, s[24:27], s64 offen lds"); issued.append(("w", s))
        a("s_add_u32 s64, s64, 0x2000")
        a(f"s_add_u32 m0, s62, {sl*2048+1024}")
        if s >= 20: a("s_min_u32 s64, s64, s68")
        a(f"buffer_load_dwordx4 v{VD}, s[24:27], s64 offen lds"); issued.append(("w", s))
        a("s_add_u32 s64, s64, 0x2000")
    def a_rd(s):
        sl = s % NWS; d = AB + 8*(s & 1)
        for ci in range(2):
            a(f"ds_read_b64_tr_b16 v[{d+4*ci}:{d+4*ci+1}], v{VT} offset:{sl*2048+ci*256}")
            a(f"ds_read_b64_tr_b16 v[{d+4*ci+2}:{d+4*ci+3}], v{VT} offset:{sl*2048+ci*256+1024}")
    for s in range(PD): h_load(s)
    a_rd(0)
    a(f"buffer_load_dwordx4 v[{XV}:{XV+3}], v{VG}, s[36:39], s58 offen"); issued.append(("x", 0))
    a(f"buffer_load_dwordx4 v[{XV+4}:{XV+7}], v{VG}, s[36:39], s59 offen"); issued.append(("x", 1))
    for s in range(NS):
        b = HB + 8*(s % PD); d = AB + 8*(s & 1)
        def cs(c): return "0" if s == 0 else f"v[{c}:{c+15}]"
        n = need([("h0", s), ("w", s+1)])
        a(f"s_waitcnt vmcnt({n}) lgkmcnt(0)")
        if s+1 < NS: a_rd(s+1)
        a(f"v_mfma_f32_32x32x16_bf16 v[{ACC}:{ACC+15}], v[{d}:{d+3}], v[{b}:{b+3}], {cs(ACC)}")
        if s + NWS < NS: wd_dma(s+NWS)
        a(f"v_mfma_f32_32x32x16_bf16 v[{ACC+32}:{ACC+47}], v[{d+4}:{d+7}], v[{b}:{b+3}], {cs(ACC+32)}")
        a(f"s_waitcnt vmcnt({need([('h1', s)])})")
        a(f"v_mfma_f32_32x32x16_bf16 v[{ACC+16}:{ACC+31}], v[{d}:{d+3}], v[{b+4}:{b+7}], {cs(ACC+16)}")
        a(f"v_mfma_f32_32x32x16_bf16 v[{ACC+48}:{ACC+63}], v[{d+4}:{d+7}], v[{b+4}:{b+7}], {cs(ACC+48)}")
        if s + PD < NS: h_load(s+PD)
        if RTALL and s in (0, 4, 8, 13, 17): stamp(a, 20+s, "k1")
    stamp(a, 7, "k1")
    a("s_mov_b32 s61, 0")
    if os.environ.get("E1"): a("s_branch L_k2g_go")
    a.label("L_k2g_poll")
    a(f"buffer_load_dword v{VP}, v{VF}, s[32:35], s60 offen {PS}")
    a("s_add_u32 s61, s61, 1")
    a("s_waitcnt vmcnt(0)")
    a(f"v_cmp_ne_u32 vcc, 1, v{VP}")
    a("s_and_b32 s3, vcc_lo, 0xff")
    a("s_cbranch_scc0 L_k2g_go")
    a(f"s_sleep {SLP}")
    a("s_cmp_lt_u32 s61, 0x40000")
    a("s_cbranch_scc1 L_k2g_poll")
    a.label("L_k2g_go")
    a(f"buffer_load_dwordx4 v[{SV}:{SV+3}], v{VG}, s[28:31], s58 offen sc0 sc1")
    a(f"buffer_load_dwordx4 v[{SV+4}:{SV+7}], v{VG}, s[28:31], s59 offen sc0 sc1")
    stamp(a, 8, "k1")
    FB = HB
    a("v_add_u32 v4, s62, v3")
    for q in range(4):
        a(f"s_sub_u32 s56, {q+3}, s50"); a("s_and_b32 s56, s56, 3"); a("s_lshl_b32 s56, s56, 12")
        a("v_add_u32 v5, s56, v4")
        a(f"s_cmp_eq_u32 s50, {q}"); a(f"s_cbranch_scc1 L_k2g_own{q}")
        for i in range(4): a(f"ds_write_b128 v5, v[{ACC+16*q+4*i}:{ACC+16*q+4*i+3}] offset:{1024*i}")
        a(f"s_branch L_k2g_nx{q}")
        a.label(f"L_k2g_own{q}")
        for i in range(16): a(f"v_mov_b32 v{FB+i}, v{ACC+16*q+i}")
        a.label(f"L_k2g_nx{q}")
    a("s_waitcnt lgkmcnt(0)"); a("s_barrier")
    for sl in range(3):
        a(f"s_sub_u32 s56, s50, {sl+1}"); a("s_and_b32 s56, s56, 3"); a(f"s_mul_i32 s56, s56, {WRING}"); a(f"s_add_u32 s56, s56, {sl*4096}")
        a("v_add_u32 v4, s56, v3")
        for i in range(4): a(f"ds_read_b128 v[{ACC+16*sl+4*i}:{ACC+16*sl+4*i+3}], v4 offset:{1024*i}")
    a("v_and_b32 v5, 15, v1"); a("v_mul_u32_u24 v5, 144, v5"); a("v_bfe_u32 v6, v1, 4, 1"); a(f"v_mul_u32_u24 v6, {WRING}, v6"); a("v_add_u32 v5, v5, v6")
    a("v_lshrrev_b32 v6, 5, v1")
    a("s_and_b32 s56, s50, 1"); a(f"s_mul_i32 s56, s56, {2*WRING}")
    a("s_lshr_b32 s57, s50, 1"); a("s_lshl_b32 s57, s57, 6"); a("s_add_u32 s56, s56, s57"); a(f"s_add_u32 s56, s56, 12288")
    a("v_lshl_add_u32 v5, v6, 3, v5"); a("v_add_u32 v5, s56, v5")
    a("s_waitcnt lgkmcnt(0)")
    for i in range(16):
        a(f"v_add_f32 v{FB+i}, v{FB+i}, v{ACC+i}"); a(f"v_add_f32 v{ACC+16+i}, v{ACC+16+i}, v{ACC+32+i}")
    for i in range(16): a(f"v_add_f32 v{FB+i}, v{FB+i}, v{ACC+16+i}")
    NL2E = -math.log2(math.e)
    for i in range(0, 16, 2):
        y = FB + i; t = ACC + 2*i
        a(f"v_cvt_pk_bf16_f32 v{t}, v{y}, v{y+1}")
        a(f"v_lshlrev_b32 v{y}, 16, v{t}"); a(f"v_and_b32 v{y+1}, 0xffff0000, v{t}")
        a(f"v_mul_f32 v{t}, {fhex(NL2E)}, v{y}"); a(f"v_mul_f32 v{t+1}, {fhex(NL2E)}, v{y+1}")
        a(f"v_exp_f32 v{t}, v{t}"); a(f"v_exp_f32 v{t+1}, v{t+1}")
    for i in range(0, 16, 2):
        t = ACC + 2*i
        a(f"v_add_f32 v{t}, 1.0, v{t}"); a(f"v_add_f32 v{t+1}, 1.0, v{t+1}")
        a(f"v_rcp_f32 v{t}, v{t}"); a(f"v_rcp_f32 v{t+1}, v{t+1}")
    for i in range(0, 16, 2):
        y = FB + i; t = ACC + 2*i
        a(f"v_mul_f32 v{y}, v{y}, v{t}"); a(f"v_mul_f32 v{y+1}, v{y+1}, v{t+1}")
        a(f"v_cvt_pk_bf16_f32 v{FB+16+i//2}, v{y}, v{y+1}")
    for q in range(4): a(f"ds_write_b64 v5, v[{FB+16+2*q}:{FB+17+2*q}] offset:{16*q}")
    a("s_waitcnt lgkmcnt(0)"); a("s_barrier")
    a(f"ds_read_b128 v[8:11], v{VL} offset:12288"); a(f"ds_read_b128 v[12:15], v{VL} offset:{12288+2*WRING}")
    a("s_waitcnt vmcnt(0)")
    stamp(a, 9, "k1")
    for i in range(8):
        a(f"v_lshlrev_b32 v{16+2*i}, 16, v{SV+i}"); a(f"v_and_b32 v{17+2*i}, 0xffff0000, v{SV+i}")
        a(f"v_lshlrev_b32 v{32+2*i}, 16, v{XV+i}"); a(f"v_and_b32 v{33+2*i}, 0xffff0000, v{XV+i}")
    a("s_waitcnt lgkmcnt(0)")
    for i in range(8):
        a(f"v_lshlrev_b32 v{48+2*i}, 16, v{8+i}"); a(f"v_and_b32 v{49+2*i}, 0xffff0000, v{8+i}")
    for i in range(8): a(f"v_pk_mul_f32 {P(16+2*i)}, {P(16+2*i)}, {P(48+2*i)}")
    for i in range(8): a(f"v_cvt_pk_bf16_f32 v{8+i}, v{16+2*i}, v{17+2*i}")
    for i in range(8):
        a(f"v_lshlrev_b32 v{16+2*i}, 16, v{8+i}"); a(f"v_and_b32 v{17+2*i}, 0xffff0000, v{8+i}")
    for i in range(8): a(f"v_pk_add_f32 {P(16+2*i)}, {P(16+2*i)}, {P(32+2*i)}")
    for i in range(8): a(f"v_cvt_pk_bf16_f32 v{8+i}, v{16+2*i}, v{17+2*i}")
    a(f"buffer_store_dwordx4 v[8:11], v{VG}, s[40:43], s58 offen")
    a(f"buffer_store_dwordx4 v[12:15], v{VG}, s[40:43], s59 offen")
    stamp_flush(a, 10, "k1", 5)
    a("s_endpgm")


RQ = 5152
R2 = 1.0/math.sqrt(2.0)
def f_cont(a):
    A = [8+2*i for i in range(8)]; B = [24+2*i for i in range(8)]
    TW1 = [40+2*i for i in range(8)]; TW2 = [56+2*i for i in range(8)]
    Y = 72
    PFS = int(os.environ.get("PFS", "0"))
    if PFS: a("s_load_dwordx2 s[40:41], s[0:1], 48")
    srd_from_ptr(a, 32, 12, SZ_FLAG, WS_FLAG)
    a("v_and_b32 v1, 63, v0")
    a("v_lshrrev_b32 v2, 6, v0")
    a("v_readfirstlane_b32 s50, v2")
    a("s_lshr_b32 s56, s14, 2"); a(f"s_mul_i32 s56, s56, {YSTR}"); a("s_and_b32 s3, s14, 3"); a("s_lshl_b32 s3, s3, 2"); a("s_add_u32 s56, s56, s3"); a(f"s_add_u32 s56, s56, {FL_Y}")
    a("v_mov_b32 v140, 1"); a("v_mov_b32 v141, 0")
    rowgroup_map(a, 14, 2)
    a("v_lshrrev_b32 v5, 3, v1"); a("v_and_b32 v6, 7, v1")
    a("v_lshlrev_b32 v3, 4, v1"); a("v_lshlrev_b32 v4, 4, v6")
    a("s_lshl_b32 s51, s14, 3"); a("s_lshl_b32 s52, s50, 1"); a("s_add_u32 s51, s51, s52")
    a("v_lshrrev_b32 v120, 2, v0"); a("v_and_b32 v121, 3, v0")
    a(f"v_mul_u32_u24 v122, {CSTR}, v120"); a("v_lshlrev_b32 v123, 4, v121"); a("v_add_u32 v122, v122, v123")
    a("s_lshl_b32 s53, s14, 6")
    a(f"v_mul_u32_u24 v142, {YSTR}, v1")
    a("s_and_b32 s57, s2, 7"); a(f"s_mul_i32 s57, s57, {FSTR}"); a(f"s_add_u32 s57, s57, {FL_P}")
    a("s_waitcnt vmcnt(0)")
    a("s_barrier")
    a("s_cmp_lg_u32 s50, 0"); a("s_cbranch_scc1 L_f_nof")
    a("s_mov_b64 exec, 1")
    if not os.environ.get("E3"): a("buffer_store_dword v140, v141, s[32:35], s56 offen")
    a("s_mov_b64 exec, -1")
    a.label("L_f_nof")
    stamp(a, 8, "k2")
    if os.environ.get("E1"): a("s_endpgm")
    if PFS:
        a("s_waitcnt lgkmcnt(0)")
        srd_from_ptr(a, 40, 40, 1376*1024)
        a(f"v_mul_u32_u24 v150, {PFS}, v0")
        a("s_lshr_b32 s3, s2, 3"); a("s_mul_i32 s3, s3, 44032")
        for i in range(-(-44032//(PFS*256))):
            a(f"buffer_load_dword v{151+i}, v150, s[40:43], s3 offen")
            a(f"s_add_u32 s3, s3, {PFS*256}")
    load_tw(a, TW2[0], 4, 20, T_R2, 8)
    load_tw(a, TW1[0], 3, 20, T_R1, 64)
    srd_from_ptr(a, 24, 12, SZ_S, WS_S)
    a("s_lshl_b32 s55, s51, 10")
    a("v_lshrrev_b32 v123, 3, v120"); a("v_add_u32 v123, v123, v120"); a("v_lshlrev_b32 v123, 4, v123")
    a(f"v_mul_u32_u24 v124, {RQ}, v121"); a("v_add_u32 v123, v123, v124")
    a(f"s_mul_i32 s61, s50, {RQ}")
    a("v_mul_u32_u24 v124, 9, v6"); a("v_add_u32 v125, v124, v5"); a("v_lshlrev_b32 v125, 4, v125"); a("v_add_u32 v125, s61, v125")
    a("v_lshlrev_b32 v7, 3, v6"); a("v_add_u32 v7, v7, v5")
    a("v_sub_u32 v126, 64, v7"); a("v_lshrrev_b32 v127, 3, v126"); a("v_add_u32 v126, v126, v127"); a("v_lshlrev_b32 v126, 4, v126"); a("v_add_u32 v126, s61, v126")
    a("v_sub_u32 v127, 256, v7"); a("v_and_b32 v127, 255, v127"); a("v_lshrrev_b32 v128, 3, v127"); a("v_add_u32 v127, v127, v128"); a("v_lshlrev_b32 v127, 4, v127"); a("v_add_u32 v127, s61, v127")
    a("v_lshlrev_b32 v129, 3, v1"); a("v_add_u32 v129, s61, v129")
    a("v_mul_u32_u24 v130, 72, v5"); a("v_add_u32 v131, v130, v6"); a("v_lshlrev_b32 v131, 3, v131"); a("v_add_u32 v131, s61, v131")
    a("v_add_u32 v132, v124, v130"); a("v_lshlrev_b32 v132, 3, v132"); a("v_add_u32 v132, s61, v132")
    a("v_lshlrev_b32 v133, 4, v5"); a("v_add_u32 v133, v133, v129")
    a("v_mul_u32_u24 v134, 80, v1"); a("v_add_u32 v134, s61, v134")
    a("s_mov_b32 s62, 0")
    a("s_cmp_lg_u32 s50, 0"); a("s_cbranch_scc1 L_f_go")
    a("s_lshr_b32 s3, s2, 3"); a(f"s_cmp_lg_u32 s3, {LEAD}"); a("s_cbranch_scc1 L_f_poll")
    a(f"s_mov_b32 s63, {FL_Y}")
    a.label("L_f_lead")
    a("buffer_load_dwordx4 v[144:147], v142, s[32:35], s63 offen sc0 sc1")
    a("s_add_u32 s62, s62, 1")
    a("s_waitcnt vmcnt(0)")
    a("v_and_b32 v144, v144, v145"); a("v_and_b32 v146, v146, v147"); a("v_and_b32 v144, v144, v146")
    a("v_cmp_ne_u32 vcc, 1, v144")
    a("s_cmp_eq_u64 vcc, 0")
    a("s_cbranch_scc1 L_f_pub")
    a(f"s_sleep {SLP}")
    a("s_cmp_lt_u32 s62, 0x40000")
    a("s_cbranch_scc1 L_f_lead")
    a("s_branch L_f_go")
    a.label("L_f_pub")
    a("s_mov_b64 exec, 1")
    a("buffer_store_dword v140, v141, s[32:35], s57 offen")
    a("s_mov_b64 exec, -1")
    a("s_branch L_f_go")
    a.label("L_f_poll")
    for k in range(4):
        a(f"buffer_load_dword v143, v141, s[32:35], s57 offen {PY if k < 3 else 'sc0 sc1'}")
        a("s_waitcnt vmcnt(0)")
        a("v_cmp_ne_u32 vcc, 1, v143")
        a("s_cmp_eq_u64 vcc, 0")
        a("s_cbranch_scc1 L_f_go")
        a(f"s_sleep {int(os.environ.get('SLPY', '8'))}")
    a("s_add_u32 s62, s62, 1")
    a("s_cmp_lt_u32 s62, 0x10000")
    a("s_cbranch_scc1 L_f_poll")
    a.label("L_f_go")
    a("s_barrier")
    stamp(a, 9, "k2")
    for i in range(4):
        a(f"buffer_load_dwordx4 v[{Y+4*i}:{Y+4*i+3}], v122, s[28:31], s53 offen" + os.environ.get("Y2SC", ""))
        if i < 3: a(f"s_add_u32 s53, s53, {64*CSTR}")
    a("s_waitcnt vmcnt(0)")
    for i in range(4): a(f"ds_write_b128 v123, v[{Y+4*i}:{Y+4*i+3}] offset:{72*16*i}")
    a("s_waitcnt lgkmcnt(0)"); a("s_barrier")
    for k2 in range(4): a(f"ds_read_b128 v[{Y+4*k2}:{Y+4*k2+3}], v125 offset:{72*16*k2}")
    a(f"ds_read_b128 v[{Y+16}:{Y+19}], v127")
    for k2 in range(5, 8): a(f"ds_read_b128 v[{Y+4*k2}:{Y+4*k2+3}], v126 offset:{72*16*(7-k2)}")
    a("s_waitcnt lgkmcnt(0)")
    for k2 in range(4):
        y = Y + 4*k2
        cadd_pi(a, A[k2], y, y+2)
    for k2 in range(4, 8):
        y = Y + 4*k2
        if NPK[0]:
            a(f"v_add_f32 v{A[k2]}, v{y}, v{y+3}"); a(f"v_sub_f32 v{A[k2]+1}, v{y+2}, v{y+1}")
        else: a(f"v_pk_add_f32 {P(A[k2])}, {P(y)}, {P(y+2)} op_sel:[0,1] op_sel_hi:[1,0] neg_hi:[1,0]")
    a("v_cmp_eq_u32 vcc, 0, v1")
    a(f"v_cndmask_b32 v{A[0]}, v{A[0]}, v{Y}, vcc"); a(f"v_cndmask_b32 v{A[0]+1}, v{A[0]+1}, v{Y+2}, vcc")
    a(f"v_cndmask_b32 v{A[4]}, v{A[4]}, v{Y+17}, vcc"); a(f"v_cndmask_b32 v{A[4]+1}, v{A[4]+1}, v{Y+19}, vcc")
    bfly8(a, A, B, 48, inv=True)
    for n0 in range(8): a(f"ds_write_b64 v132, {P(B[n0])} offset:{8*n0}")
    a(f"ds_read_b64 {P(A[0])}, v131")
    for k in range(1, 8): a(f"ds_read_b64 {P(B[k])}, v131 offset:{72*k}")
    a("s_waitcnt lgkmcnt(0)")
    for k in range(1, 8): cmul(a, A[k], B[k], TW2[k], conj=True)
    bfly8(a, A, B, 48, inv=True)
    for n1 in range(8): a(f"ds_write_b64 v131, {P(B[n1])} offset:{64*n1}")
    a(f"ds_read_b64 {P(A[0])}, v129")
    for k in range(1, 8): a(f"ds_read_b64 {P(B[k])}, v129 offset:{576*k}")
    a("s_waitcnt lgkmcnt(0)")
    for k in range(1, 8): cmul(a, A[k], B[k], TW1[k], conj=True)
    bfly8(a, A, B, 48, inv=True)
    for j in range(8): a(f"ds_write_b64 v133, {P(B[j])} offset:{640*j}")
    for q in range(4): a(f"ds_read_b128 v[{A[2*q]}:{A[2*q]+3}], v134 offset:{16*q}")
    sc = 1.0/(2*2048*512)
    a(f"s_mov_b32 s46, {fhex(sc)}"); a(f"s_mov_b32 s47, {fhex(sc)}")
    a("s_and_b32 s56, s14, 7"); a("s_lshl_b32 s56, s56, 2")
    a("s_lshr_b32 s3, s14, 3"); a(f"s_mul_i32 s3, s3, {FSTR}"); a("s_add_u32 s56, s56, s3"); a(f"s_add_u32 s56, s56, {FL_S}")
    a("s_waitcnt lgkmcnt(0)")
    for e in range(8): cscale(a, A[e], A[e], 46)
    OUT = 120
    for row in range(2):
        for q in range(4):
            e0, e1 = A[2*q]+row, A[2*q+1]+row
            a(f"v_cvt_pk_bf16_f32 v{OUT+4*row+q}, v{e0}, v{e1}")
    a(f"buffer_store_dwordx4 v[{OUT}:{OUT+3}], v3, s[24:27], s55 offen")
    a(f"buffer_store_dwordx4 v[{OUT+4}:{OUT+7}], v3, s[24:27], s55 offen offset:1024")
    a("s_waitcnt vmcnt(0)")
    a("s_barrier")
    a("s_cmp_lg_u32 s50, 0"); a("s_cbranch_scc1 L_f_nos")
    a("s_mov_b64 exec, 1")
    a("buffer_store_dword v140, v141, s[32:35], s56 offen")
    a("s_mov_b64 exec, -1")
    a.label("L_f_nos")
    stamp_flush(a, 10, "k2", 5)
    a("s_endpgm")
```

```python
from gen_common import *
R2 = 1.0/math.sqrt(2.0)

WS_S = WS_G; SZ_S = SZ_G
WS_XN = 0x1700000; SZ_XN = 2048*1024
WS_FLAG = 0x1900000; SZ_FLAG = 0x100000
FSTR = 4352; FL_Y = 0; FL_H = 0x40000 + 1024; FL_S = 0x80000 + 2048; FL_P = 0xC0000 + 3072

FREG = 4928
L0_FFT = 0
L0_WJ = 4*FREG
L0_XN = L0_WJ + 64*144
L0_WD = L0_XN + 8*1040
WDT = os.environ.get('WDT', '0') == '1'
K0_LDS = L0_WD + (8192 if WDT else 0)
K0_VGPR = 96

def rowgroup_map(a, dst, src):
    a(f"s_and_b32 s{dst}, s{src}, 3"); a(f"s_lshl_b32 s{dst}, s{dst}, 6")
    a(f"s_and_b32 s3, s{src}, 4"); a("s_lshl_b32 s3, s3, 3"); a(f"s_or_b32 s{dst}, s{dst}, s3")
    a(f"s_lshr_b32 s3, s{src}, 3"); a("s_and_b32 s3, s3, 31"); a(f"s_or_b32 s{dst}, s{dst}, s3")

def wave_sum4(a, regs, sdst):
    for sh in (1, 2, 4, 8):
        for r in regs: a(f"v_add_f32_dpp v{r}, v{r}, v{r} row_shr:{sh} row_mask:0xf bank_mask:0xf bound_ctrl:0")
    for r in regs: a(f"v_add_f32_dpp v{r}, v{r}, v{r} row_bcast:15 row_mask:0xa bank_mask:0xf")
    for r in regs: a(f"v_add_f32_dpp v{r}, v{r}, v{r} row_bcast:31 row_mask:0xc bank_mask:0xf")
    for i, r in enumerate(regs): a(f"v_readlane_b32 s{sdst+i}, v{r}, 63")

def ln_two_rows_xn(a, A, T, sT, vxn):
    t0, t1, M, Rv, t2, t3 = T, T+2, T+4, T+6, T+8, T+10
    cadd(a, t0, A[0], A[1]); a(f"v_pk_mul_f32 {P(t1)}, {P(A[0])}, {P(A[0])}")
    cadd(a, t2, A[2], A[3]); a(f"v_pk_mul_f32 {P(t3)}, {P(A[1])}, {P(A[1])}")
    cadd(a, t0, t0, A[4]); a(f"v_pk_fma_f32 {P(t1)}, {P(A[2])}, {P(A[2])}, {P(t1)}")
    cadd(a, t2, t2, A[5]); a(f"v_pk_fma_f32 {P(t3)}, {P(A[3])}, {P(A[3])}, {P(t3)}")
    cadd(a, t0, t0, A[6]); a(f"v_pk_fma_f32 {P(t1)}, {P(A[4])}, {P(A[4])}, {P(t1)}")
    cadd(a, t2, t2, A[7]); a(f"v_pk_fma_f32 {P(t3)}, {P(A[5])}, {P(A[5])}, {P(t3)}")
    a(f"v_pk_fma_f32 {P(t1)}, {P(A[6])}, {P(A[6])}, {P(t1)}")
    a(f"v_pk_fma_f32 {P(t3)}, {P(A[7])}, {P(A[7])}, {P(t3)}")
    cadd(a, t0, t0, t2); cadd(a, t1, t1, t3)
    wave_sum4(a, [t0, t0+1, t1, t1+1], sT)
    a(f"v_mov_b32 v{M}, s{sT}"); a(f"v_mov_b32 v{M+1}, s{sT+1}")
    a(f"v_mov_b32 v{Rv}, s{sT+2}"); a(f"v_mov_b32 v{Rv+1}, s{sT+3}")
    a(f"v_mul_f32 v{M}, {fhex(1/512)}, v{M}"); a(f"v_mul_f32 v{M+1}, {fhex(1/512)}, v{M+1}")
    a(f"v_mul_f32 v{Rv}, {fhex(1/512)}, v{Rv}"); a(f"v_mul_f32 v{Rv+1}, {fhex(1/512)}, v{Rv+1}")
    a(f"v_fma_f32 v{Rv}, -v{M}, v{M}, v{Rv}"); a(f"v_fma_f32 v{Rv+1}, -v{M+1}, v{M+1}, v{Rv+1}")
    a(f"v_max_f32 v{Rv}, 0, v{Rv}"); a(f"v_max_f32 v{Rv+1}, 0, v{Rv+1}")
    def rnd(p, t):
        a(f"v_cvt_pk_bf16_f32 v{t}, v{p}, v{p+1}")
        a(f"v_lshlrev_b32 v{p}, 16, v{t}")
        a(f"v_and_b32 v{p+1}, 0xffff0000, v{t}")
    rnd(M, t0)
    rnd(Rv, t1)
    a(f"v_add_f32 v{Rv}, {fhex(1e-5)}, v{Rv}"); a(f"v_add_f32 v{Rv+1}, {fhex(1e-5)}, v{Rv+1}")
    for j in range(0, 4): csub(a, A[j], A[j], M)
    rnd(Rv, t1)
    a(f"v_sqrt_f32 v{Rv}, v{Rv}"); a(f"v_sqrt_f32 v{Rv+1}, v{Rv+1}")
    for j in range(4, 8): csub(a, A[j], A[j], M)
    rnd(Rv, t1)
    a(f"v_rcp_f32 v{Rv}, v{Rv}"); a(f"v_rcp_f32 v{Rv+1}, v{Rv+1}")
    tt = [t0, t0+1, t2, t2+1, t3, t3+1, M, M+1]
    for j in range(8): a(f"v_cvt_pk_bf16_f32 v{tt[j]}, v{A[j]}, v{A[j]+1}")
    for j in range(8):
        a(f"v_lshlrev_b32 v{A[j]}, 16, v{tt[j]}"); a(f"v_and_b32 v{A[j]+1}, 0xffff0000, v{tt[j]}")
    for j in range(8): a(f"v_pk_mul_f32 {P(A[j])}, {P(A[j])}, {P(Rv)}")
    for j in range(8): a(f"v_cvt_pk_bf16_f32 v{tt[j]}, v{A[j]}, v{A[j]+1}")
    for j in range(8):
        a(f"v_lshlrev_b32 v{A[j]}, 16, v{tt[j]}"); a(f"v_and_b32 v{A[j]+1}, 0xffff0000, v{tt[j]}")
        a(f"ds_write_b16 v{vxn}, v{tt[j]} offset:{128*j}")
        a(f"ds_write_b16_d16_hi v{vxn}, v{tt[j]} offset:{128*j+1040}")

def k0_fft(a):
    A = [8+2*i for i in range(8)]; B = [24+2*i for i in range(8)]
    TW1 = [40+2*i for i in range(8)]; TW2 = [56+2*i for i in range(8)]
    T = 72
    a("s_lshl_b32 s62, s49, 3"); a("s_lshl_b32 s3, s50, 1"); a("s_add_u32 s62, s62, s3")
    a("s_lshl_b32 s62, s62, 10")
    a("v_lshlrev_b32 v5, 1, v1")
    a("v_and_b32 v4, 7, v1"); a("v_lshlrev_b32 v4, 4, v4")
    a("s_waitcnt lgkmcnt(0)")
    srd_from_ptr(a, 20, 4, 2048*1024)
    for j in range(8):
        a(f"buffer_load_ushort v{A[j]}, v5, s[20:23], s62 offen offset:{128*j}")
        a(f"buffer_load_ushort v{A[j]+1}, v5, s[20:23], s62 offen offset:{128*j+1024}")
    load_tw(a, 40, 3, 24, T_R1, 64)
    load_tw(a, 56, 4, 24, T_R2, 8)
    srd_from_ptr(a, 28, 16, SZ_Y1T, WS_Y1T)
    a(f"s_mul_i32 s61, s50, {FREG}"); a(f"s_add_u32 s61, s61, {L0_FFT}")
    a(f"s_mul_i32 s3, s50, 2080"); a(f"s_add_u32 s3, s3, {L0_XN}"); a("v_add_u32 v89, s3, v5")
    a("v_lshlrev_b32 v84, 3, v1"); a("v_add_u32 v84, s61, v84")
    a("v_lshrrev_b32 v5, 3, v1"); a("v_and_b32 v6, 7, v1")
    a("v_mul_u32_u24 v85, 72, v5"); a("v_add_u32 v86, v85, v6"); a("v_lshlrev_b32 v86, 3, v86"); a("v_add_u32 v86, s61, v86")
    a("v_mul_u32_u24 v87, 9, v6"); a("v_add_u32 v87, v87, v85"); a("v_lshlrev_b32 v87, 3, v87"); a("v_add_u32 v87, s61, v87")
    a("v_lshlrev_b32 v88, 3, v6"); a("v_add_u32 v88, v88, v5"); a("v_lshlrev_b32 v88, 3, v88"); a("v_add_u32 v88, s61, v88")
    a("s_waitcnt vmcnt(8)")
    stamp(a, 1, "k0")
    for j in range(8):
        a(f"v_lshlrev_b32 v{A[j]}, 16, v{A[j]}"); a(f"v_lshlrev_b32 v{A[j]+1}, 16, v{A[j]+1}")
    ln_two_rows_xn(a, A, T, 66, 89)
    stamp(a, 2, "k0")
    bfly8(a, A, B, 64)
    a("s_waitcnt vmcnt(4)")
    for k in range(1, 8): cmul(a, A[k], B[k], TW1[k])
    a(f"ds_write_b64 v84, {P(B[0])}")
    for k in range(1, 8): a(f"ds_write_b64 v84, {P(A[k])} offset:{576*k}")
    for n1 in range(8): a(f"ds_read_b64 {P(A[n1])}, v86 offset:{64*n1}")
    a("s_waitcnt vmcnt(0) lgkmcnt(0)")
    bfly8(a, A, B, 64)
    for k in range(1, 8): cmul(a, A[k], B[k], TW2[k])
    a(f"ds_write_b64 v86, {P(B[0])}")
    for k in range(1, 8): a(f"ds_write_b64 v86, {P(A[k])} offset:{72*k}")
    for n0 in range(8): a(f"ds_read_b64 {P(A[n0])}, v87 offset:{8*n0}")
    a("s_waitcnt lgkmcnt(0)")
    bfly8(a, A, B, 64)
    for k2 in range(8): a(f"ds_write_b64 v88, {P(B[k2])} offset:{512*k2}")
    a(f"ds_write_b64 v88, {P(B[4])} offset:4096")
    Z = [8+2*i for i in range(4)]; ZM = [16+2*i for i in range(4)]
    a("v_lshrrev_b32 v5, 2, v0"); a("v_and_b32 v6, 3, v0")
    a(f"v_mul_u32_u24 v7, {FREG}, v6"); a(f"v_add_u32 v7, {L0_FFT}, v7")
    a("v_lshlrev_b32 v84, 3, v5"); a("v_add_u32 v84, v84, v7")
    a("v_sub_u32 v85, 320, v5"); a("v_lshlrev_b32 v85, 3, v85"); a("v_add_u32 v85, v85, v7")
    stamp(a, 3, "k0")
    a("s_waitcnt lgkmcnt(0)")
    a("s_barrier")
    stamp(a, 4, "k0")
    for j in range(4):
        a(f"ds_read_b64 {P(Z[j])}, v84 offset:{512*j}")
        a(f"ds_read_b64 {P(ZM[j])}, v85 offset:{512*(3-j)}")
    a("v_cmp_eq_u32 vcc, 0, v5")
    a("v_lshlrev_b32 v5, 4, v0"); a(f"s_mul_i32 s3, s49, {RS}")
    a("s_waitcnt lgkmcnt(0)")
    O = [24+4*j for j in range(4)]
    for j in range(4):
        a(f"v_pk_add_f32 {P(O[j])}, {P(Z[j])}, {P(ZM[j])} neg_hi:[0,1]")
        a(f"v_pk_add_f32 {P(O[j]+2)}, {P(Z[j])}, {P(ZM[j])} op_sel:[1,1] op_sel_hi:[0,0] neg_hi:[1,0]")
    a(f"v_add_f32 v{T}, v{Z[0]}, v{Z[0]}"); a(f"v_add_f32 v{T+1}, v{ZM[0]}, v{ZM[0]}")
    a(f"v_add_f32 v{T+2}, v{Z[0]+1}, v{Z[0]+1}"); a(f"v_add_f32 v{T+3}, v{ZM[0]+1}, v{ZM[0]+1}")
    for q in range(4): a(f"v_cndmask_b32 v{O[0]+q}, v{O[0]+q}, v{T+q}, vcc")
    for j in (1, 2, 3, 0):
        a(f"s_add_u32 s62, s3, {4096*j}")
        a(f"buffer_store_dwordx4 v[{O[j]}:{O[j]+3}], v5, s[28:31], s62 offen")
    stamp(a, 5, "k0")
    stamp_flush(a, 6, "k0", 5)
    a("s_endpgm")

WV = 8; XC = 24; DV = 30; WP = 46; DP = 54; PF = 62
def k0_aux(a):
    a("v_lshlrev_b32 v6, 1, v1")
    a("s_and_b32 s62, s2, 0xfc"); a("s_add_u32 s62, s62, s51")
    a("s_lshr_b32 s63, s62, 5")
    a("s_lshr_b32 s3, s62, 2"); a("s_and_b32 s3, s3, 7"); a("s_lshl_b32 s3, s3, 3"); a("s_add_u32 s63, s63, s3")
    a("s_and_b32 s3, s62, 3"); a("s_lshl_b32 s3, s3, 7"); a("s_add_u32 s63, s63, s3")
    a("s_mul_i32 s63, s63, 514")
    a("s_and_b32 s66, s2, 3"); a("s_lshl_b32 s66, s66, 7"); a("s_add_u32 s66, s66, s63")
    a(f"v_and_b32 v{XC}, 7, v1"); a(f"v_lshrrev_b32 v{XC+1}, 2, v{XC}"); a(f"v_and_b32 v{XC+2}, 3, v{XC}")
    a(f"v_mul_u32_u24 v{XC+1}, 32896, v{XC+1}"); a(f"v_mul_u32_u24 v{XC+2}, 263168, v{XC+2}"); a(f"v_add_u32 v{XC+1}, v{XC+1}, v{XC+2}")
    a("s_lshl_b32 s67, s2, 2"); a("s_add_u32 s67, s67, s51")
    a("v_and_b32 v7, 31, v1"); a("v_lshlrev_b32 v7, 1, v7")
    a("v_lshrrev_b32 v2, 5, v1"); a("v_lshlrev_b32 v2, 12, v2"); a("v_add_u32 v7, v7, v2")
    a("v_add_u32 v2, 0x2000, v7")
    a("v_and_b32 v4, 31, v1"); a("v_min_u32 v4, 23, v4"); a("v_lshlrev_b32 v4, 6, v4")
    a("v_lshrrev_b32 v5, 5, v1"); a("v_mul_u32_u24 v5, 2752, v5"); a("v_add_u32 v4, v4, v5")
    a("s_lshr_b32 s70, s2, 3"); a("s_and_b32 s70, s70, 31"); a("s_lshl_b32 s70, s70, 2"); a("s_add_u32 s70, s70, s51")
    a(f"s_mul_i32 s70, s70, {4*2752}")
    a("s_and_b32 s3, s2, 4")
    if os.environ.get("PFX") == "1": a("s_xor_b32 s3, s3, 4")
    a("s_mul_i32 s3, s3, 384"); a("s_add_u32 s70, s70, s3")
    a(f"s_add_u32 s71, s70, {2*2752}")
    a("s_waitcnt lgkmcnt(0)")
    srd_from_ptr(a, 32, 6, 2048*514)
    srd_from_ptr(a, 36, 8, 2048*514)
    for r in range(8):
        koff = (64*(r >> 2) + 512*(r & 3))*514
        a(f"s_add_u32 s3, s66, {koff}")
        a(f"buffer_load_ushort v{WV+2*r}, v6, s[32:35], s3 offen")
        a(f"buffer_load_ushort v{WV+2*r+1}, v6, s[36:39], s3 offen")
    a(f"buffer_load_ushort v{XC+3}, v{XC+1}, s[32:35], s63 offen offset:512")
    a(f"buffer_load_ushort v{XC+4}, v{XC+1}, s[36:39], s63 offen offset:512")
    srd_from_ptr(a, 44, 14, 1376*1024)
    if WDT:
        a("v_lshrrev_b32 v80, 5, v1"); a("v_bfe_u32 v81, v1, 4, 1"); a("v_bfe_u32 v82, v1, 2, 2"); a("v_and_b32 v83, 3, v1")
        a("v_lshlrev_b32 v84, 12, v80"); a("v_lshl_add_u32 v84, v82, 10, v84"); a("v_lshl_add_u32 v84, v81, 6, v84"); a("v_lshl_add_u32 v84, v83, 4, v84")
        a("v_lshlrev_b32 v85, 9, v80"); a("v_lshl_add_u32 v85, v82, 6, v85"); a("v_lshl_add_u32 v85, v81, 5, v85"); a("v_lshl_add_u32 v85, v83, 3, v85")
        a("s_lshl_b32 s68, s51, 11"); a(f"s_add_u32 s68, s68, {L0_WD}"); a("v_add_u32 v85, s68, v85")
        a("s_lshr_b32 s69, s67, 3"); a("s_lshl_b32 s69, s69, 14"); a("s_and_b32 s3, s67, 7"); a("s_lshl_b32 s3, s3, 7"); a("s_add_u32 s69, s69, s3")
        a("s_mov_b32 m0, s68")
        a("buffer_load_dwordx4 v84, s[44:47], s69 offen lds")
        a("s_add_u32 m0, s68, 1024"); a("s_add_u32 s69, s69, 0x2000")
        a("buffer_load_dwordx4 v84, s[44:47], s69 offen lds")
    def wd_loads(sf, dv):
        a(f"s_lshr_b32 s69, s{sf}, 4"); a("s_lshl_b32 s69, s69, 14")
        a(f"s_and_b32 s3, s{sf}, 15"); a("s_lshl_b32 s3, s3, 6"); a("s_add_u32 s69, s69, s3")
        for e in range(8):
            a(f"buffer_load_ushort v{dv+e}, v{7 if e < 4 else 2}, s[44:47], s69 offen offset:{1024*(e&3)}")
    NOWD = os.environ.get("NOWD", "0") == "1"
    if not NOWD:
        wd_loads(67, DV)
        a("s_add_u32 s68, s67, 1024")
        wd_loads(68, DV+8)
    npf = 2 if WDT else 0
    if os.environ.get("PFW", "1") == "2":
        a("s_cmp_lt_u32 s67, 512"); a("s_cselect_b32 s72, s10, s12"); a("s_cselect_b32 s73, s11, s13")
        a("s_and_b32 s73, s73, 0xffff"); a(f"s_mov_b32 s74, {512*2752}"); a("s_mov_b32 s75, 0x00020000")
        a("v_min_u32 v4, 42, v1"); a("v_lshlrev_b32 v4, 6, v4")
        a("s_and_b32 s70, s67, 511"); a("s_mul_i32 s70, s70, 2752")
        a(f"buffer_load_dword v{PF}, v4, s[72:75], s70 offen")
        npf += 1
    if os.environ.get("PFW", "1") == "1":
        srd_from_ptr(a, 72, 10, 512*2752)
        srd_from_ptr(a, 76, 12, 512*2752)
        a(f"buffer_load_dword v{PF}, v4, s[72:75], s70 offen")
        a(f"buffer_load_dword v{PF+1}, v4, s[76:79], s70 offen")
        a(f"buffer_load_dword v{PF+2}, v4, s[72:75], s71 offen")
        a(f"buffer_load_dword v{PF+3}, v4, s[76:79], s71 offen")
        npf += 4
    if os.environ.get("PFC", "1") == "1":
        a("s_getpc_b64 s[72:73]")
        a.raw("L_k0_pc2:")
        a("s_add_u32 s72, s72, k1_kernel-L_k0_pc2")
        a("s_addc_u32 s73, s73, 0")
        a("s_and_b32 s73, s73, 0xffff")
        a(f"s_mov_b32 s74, TWTAB+{TAB_SIZE}-k1_kernel")
        a("s_mov_b32 s75, 0x00020000")
        a("v_and_b32 v5, 15, v1"); a("v_lshlrev_b32 v5, 6, v5")
        a("s_lshr_b32 s70, s2, 3"); a("s_and_b32 s70, s70, 31"); a("s_lshl_b32 s70, s70, 2"); a("s_add_u32 s70, s70, s51"); a("s_lshl_b32 s70, s70, 10")
        a(f"buffer_load_dword v{PF+4}, v5, s[72:75], s70 offen")
        npf += 1
    if NOWD and os.environ.get("PFD", "1") == "1" and not WDT:
        a("v_min_u32 v5, 10, v1"); a("v_lshlrev_b32 v5, 7, v5"); a(f"s_mul_i32 s70, s67, {11*128}")
        a(f"buffer_load_dword v{PF+5}, v5, s[44:47], s70 offen")
        npf += 1
    srd_from_ptr(a, 40, 16, SZ_WT, WS_WT)
    srd_from_ptr(a, 24, 16, SZ_WD, WS_WD)
    srd_from_ptr(a, 28, 16, SZ_XN, WS_XN)
    a("s_lshl_b32 s3, s51, 8"); a("s_add_u32 s3, s3, s2"); a("s_cmp_lt_u32 s3, 32"); a("s_cbranch_scc0 L_k0_nf")
    srd_from_ptr(a, 20, 16, SZ_FLAG, WS_FLAG)
    for q in range(4): a(f"v_mov_b32 v{PF+6+q}, 0")
    a(f"s_mul_i32 s3, s2, {FSTR}")
    a("s_mov_b64 exec, 255")
    for fl in (FL_H, FL_S, FL_P):
        a(f"s_add_u32 s70, s3, {fl}")
        a(f"buffer_store_dwordx4 v[{PF+6}:{PF+9}], v3, s[20:23], s70 offen")
    a("s_mov_b64 exec, -1")
    a(f"s_lshl_b32 s70, s2, 10"); a(f"s_add_u32 s70, s70, {FL_Y}")
    a(f"buffer_store_dwordx4 v[{PF+6}:{PF+9}], v3, s[20:23], s70 offen")
    a("s_waitcnt vmcnt(0)")
    a.label("L_k0_nf")
    a("v_mul_u32_u24 v6, 144, v1"); a("s_lshl_b32 s3, s51, 5"); a(f"s_add_u32 s3, s3, {L0_WJ}"); a("v_add_u32 v6, s3, v6")
    a(f"s_waitcnt vmcnt({(0 if NOWD else 16)+npf})")
    stamp(a, 1, "k0")
    for r in range(8): a(f"v_lshl_or_b32 v{WP+r}, v{WV+2*r+1}, 16, v{WV+2*r}")
    a(f"ds_write_b128 v6, v[{WP}:{WP+3}]"); a(f"ds_write_b128 v6, v[{WP+4}:{WP+7}] offset:16")
    a(f"v_lshl_or_b32 v{XC+3}, v{XC+4}, 16, v{XC+3}")
    a(f"v_lshlrev_b32 v{XC}, 2, v{XC}"); a("s_lshl_b32 s69, s62, 5"); a("s_add_u32 s69, s69, 0x200000")
    a(f"buffer_store_dword v{XC+3}, v{XC}, s[40:43], s69 offen")
    if not NOWD:
        a(f"s_waitcnt vmcnt({1+npf})")
        stamp(a, 2, "k0")
        for half in (0, 1):
            dv = DV + 8*half
            for q in range(4): a(f"v_lshl_or_b32 v{DP+4*half+q}, v{dv+2*q+1}, 16, v{dv+2*q}")
        for half, sf in ((0, 67), (1, 68)):
            a(f"s_lshl_b32 s3, s{sf}, 10")
            a(f"buffer_store_dwordx4 v[{DP+4*half}:{DP+3+4*half}], v3, s[24:27], s3 offen")
    else: stamp(a, 2, "k0")
    if WDT:
        a(f"s_waitcnt vmcnt({npf-2})")
        for ci in range(2):
            a(f"ds_read_b64_tr_b16 v[{86+4*ci}:{87+4*ci}], v85 offset:{ci*256}")
            a(f"ds_read_b64_tr_b16 v[{88+4*ci}:{89+4*ci}], v85 offset:{ci*256+1024}")
        a("s_lshl_b32 s69, s67, 11")
        a("s_waitcnt lgkmcnt(0)")
        a("buffer_store_dwordx4 v[86:89], v3, s[24:27], s69 offen")
        a("buffer_store_dwordx4 v[90:93], v3, s[24:27], s69 offen offset:1024")
    a("v_lshrrev_b32 v5, 3, v1"); a("v_and_b32 v6, 7, v1"); a("s_lshl_b32 s3, s51, 4"); a("v_add_u32 v5, s3, v5")
    a("v_mul_u32_u24 v7, 144, v5"); a("v_lshlrev_b32 v8, 4, v6"); a("v_add_u32 v7, v7, v8")
    a(f"v_add_u32 v7, {L0_WJ}, v7")
    a("v_lshlrev_b32 v5, 13, v5"); a("v_add_u32 v5, v5, v8")
    a("s_and_b32 s62, s2, 3"); a("s_lshl_b32 s62, s62, 19")
    a("s_lshr_b32 s63, s2, 2"); a("s_lshl_b32 s63, s63, 7"); a("s_add_u32 s62, s62, s63")
    a("s_add_u32 s63, s62, 0x10000")
    a("v_lshrrev_b32 v9, 3, v1"); a("s_lshl_b32 s3, s51, 3"); a("v_add_u32 v9, s3, v9")
    a("v_mul_u32_u24 v10, 1040, v6"); a("v_lshl_add_u32 v10, v9, 4, v10"); a(f"v_add_u32 v10, {L0_XN}, v10")
    a("v_lshrrev_b32 v11, 1, v9"); a("v_lshlrev_b32 v11, 10, v11"); a("v_and_b32 v9, 1, v9"); a("v_lshl_add_u32 v11, v9, 9, v11")
    a("v_add_u32 v11, v11, v8")
    a("s_lshr_b32 s66, s49, 2"); a("s_lshl_b32 s66, s66, 15"); a("s_and_b32 s3, s49, 3"); a("s_lshl_b32 s3, s3, 7"); a("s_add_u32 s66, s66, s3")
    a("s_add_u32 s67, s66, 0x4000")
    stamp(a, 3, "k0")
    a("s_waitcnt lgkmcnt(0)")
    a("s_barrier")
    stamp(a, 4, "k0")
    a("ds_read_b128 v[12:15], v10"); a("ds_read_b128 v[16:19], v10 offset:512")
    a("ds_read_b128 v[20:23], v7"); a(f"ds_read_b128 v[24:27], v7 offset:{8*144}")
    a("s_waitcnt lgkmcnt(2)")
    a("buffer_store_dwordx4 v[12:15], v11, s[28:31], s66 offen")
    a("buffer_store_dwordx4 v[16:19], v11, s[28:31], s67 offen")
    a("s_waitcnt lgkmcnt(0)")
    a("buffer_store_dwordx4 v[20:23], v5, s[40:43], s62 offen")
    a("buffer_store_dwordx4 v[24:27], v5, s[40:43], s63 offen")
    stamp(a, 5, "k0")
    stamp_flush(a, 6, "k0", 5)
    a("s_endpgm")

def k0_kernel(a):
    stamp(a, 0, "k0")
    a("s_load_dwordx4 s[4:7], s[0:1], 0")
    a("s_load_dwordx2 s[8:9], s[0:1], 16")
    a("s_load_dwordx2 s[10:11], s[0:1], 32"); a("s_load_dwordx2 s[12:13], s[0:1], 40")
    a("s_load_dwordx2 s[14:15], s[0:1], 48")
    a("s_load_dwordx2 s[16:17], s[0:1], 72")
    srd_table(a, 24, "L_k0_pc")
    a(f"s_mov_b32 s64, {fhex(R2)}"); a(f"s_mov_b32 s65, {fhex(R2)}")
    a("v_and_b32 v1, 63, v0")
    a("v_lshrrev_b32 v2, 6, v0")
    a("v_readfirstlane_b32 s50, v2")
    a("v_lshlrev_b32 v3, 4, v1")
    rowgroup_map(a, 49, 2)
    a("s_and_b32 s51, s50, 3")
    a("s_cmp_ge_u32 s50, 4"); a("s_cbranch_scc1 L_k0_aux")
    k0_fft(a)
    a.label("L_k0_aux")
    k0_aux(a)
```

```python
import sys, os, re, importlib
os.environ.setdefault("NOWD", "1")
os.environ.setdefault("FPRIO", "3")
os.environ.setdefault("LATEWD", "1")
os.environ.setdefault("PY", "sc1")
from gen_n0 import *
import gen_m1
G = importlib.import_module("gen_" + os.environ.get("GM", "m2"))
from gen_k23 import k2_col_role, K2_COL_LDS

HDR = open("cdna_kernels/" + KN + ".s.ref").read().split("; Override launch geometry")[0]

def kstart(a, name):
    a.raw(f".globl {name}\n.p2align 8\n.type {name},@function")
    a.label(name)

def build():
    a = Asm()
    k0, k1 = "k0_kernel", "k1_kernel"
    lds1 = max(K2_COL_LDS, G.M_LDS)
    a.raw(HDR + f"; @launch kernel={k0} grid=(256,1,1) block=(512,1,1) lds={K0_LDS}\n"
              + f"; @launch kernel={k1} grid=(512,1,1) block=(256,1,1) lds={lds1}\n"
              + '.amdgcn_target "amdgcn-amd-amdhsa--gfx950"\n.text')
    kstart(a, k0)
    a("s_cmp_ge_u32 s2, 256"); a("s_cbranch_scc1 L_k0_exit")
    k0_kernel(a)
    a.label("L_k0_exit")
    a("s_endpgm")
    kstart(a, k1)
    a("s_cmp_ge_u32 s2, 512"); a("s_cbranch_scc1 L_k1_exit")
    a("s_cmp_ge_u32 s2, 256"); a("s_cbranch_scc1 L_k1_col")
    gp = os.environ.get("GPRIO", "0")
    if gp != "0": a(f"s_setprio {gp}")
    G.g_role(a)
    a.label("L_k1_col")
    fp = os.environ.get("FPRIO", "0")
    if fp != "0": a(f"s_setprio {fp}")
    a("s_sub_u32 s2, s2, 256")
    NPK[0] = os.environ.get('NPK', '1') == '1'
    k2_col_role(a, getattr(G, "f_cont", gen_m1.f_cont))
    NPK[0] = False
    a.label("L_k1_exit")
    a("s_endpgm")
    txt = a.render()
    txt = re.sub(r"(buffer_store_dword\S* .*offen.*)", r"\1 sc0 sc1", txt)
    txt += twiddle_table()
    txt += '.section .rodata,"a"\n'
    for nm, vg in ((k0, K0_VGPR), (k1, G.M_VGPR)):
        txt += ".p2align 6\n" + kernel_desc(nm, vg)
    return txt

if __name__ == "__main__":
    out = sys.argv[1] if len(sys.argv) > 1 else "cdna_kernels/" + KN + ".s"
    open(out, "w").write(build())
```

```python
import math, struct
from asmgen import *

KN = "recurrent_scan__spectral_gfnet__glu_gated_geglu__prompt"

CSTR = 16384 + 256
RS = 16384 + 256
WS_Y1T = 0x000000; SZ_Y1T = 256*RS
WS_Y2T = 0x500000; SZ_Y2T = 256*CSTR
WS_H   = 0xA00000; SZ_H = 86*64*1024
WS_WD  = 0x1000000; SZ_WD = 86*16*1024
WS_WT  = 0x1200000; SZ_WT = 257*2048*4
WS_G   = 0x1500000; SZ_G = 2048*512*2

def f2u(x): return struct.unpack("<I", struct.pack("<f", x))[0]
def fhex(x): return "0x%08x" % f2u(x)

def srd_from_ptr(a, sd, sp, nbytes, off=0):
    if off:
        a(f"s_add_u32 s{sd}, s{sp}, 0x{off:x}")
        a(f"s_addc_u32 s{sd+1}, s{sp+1}, 0")
        a(f"s_and_b32 s{sd+1}, s{sd+1}, 0xffff")
    else:
        a(f"s_mov_b32 s{sd}, s{sp}")
        a(f"s_and_b32 s{sd+1}, s{sp+1}, 0xffff")
    a(f"s_mov_b32 s{sd+2}, 0x{nbytes:x}")
    a(f"s_mov_b32 s{sd+3}, 0x00020000")

def srd_table(a, sd, lbl):
    a(f"s_getpc_b64 s[{sd}:{sd+1}]")
    a.raw(f"{lbl}:")
    a(f"s_add_u32 s{sd}, s{sd}, TWTAB-{lbl}")
    a(f"s_addc_u32 s{sd+1}, s{sd+1}, 0")
    a(f"s_and_b32 s{sd+1}, s{sd+1}, 0xffff")
    a(f"s_mov_b32 s{sd+2}, {TAB_SIZE}")
    a(f"s_mov_b32 s{sd+3}, 0x00020000")

def P(i): return f"v[{i}:{i+1}]"

NPK = [False]
def cadd(a, d, x, y):
    if NPK[0]:
        a(f"v_add_f32 v{d}, v{x}, v{y}"); a(f"v_add_f32 v{d+1}, v{x+1}, v{y+1}")
    else: a(f"v_pk_add_f32 {P(d)}, {P(x)}, {P(y)}")
def csub(a, d, x, y):
    if NPK[0]:
        a(f"v_sub_f32 v{d}, v{x}, v{y}"); a(f"v_sub_f32 v{d+1}, v{x+1}, v{y+1}")
    else: a(f"v_pk_add_f32 {P(d)}, {P(x)}, {P(y)} neg_lo:[0,1] neg_hi:[0,1]")
def cadd_mi(a, d, x, y):
    if NPK[0]:
        assert d != y
        a(f"v_add_f32 v{d}, v{x}, v{y+1}"); a(f"v_sub_f32 v{d+1}, v{x+1}, v{y}")
    else: a(f"v_pk_add_f32 {P(d)}, {P(x)}, {P(y)} op_sel:[0,1] op_sel_hi:[1,0] neg_hi:[0,1]")
def cadd_pi(a, d, x, y):
    if NPK[0]:
        assert d != y
        a(f"v_sub_f32 v{d}, v{x}, v{y+1}"); a(f"v_add_f32 v{d+1}, v{x+1}, v{y}")
    else: a(f"v_pk_add_f32 {P(d)}, {P(x)}, {P(y)} op_sel:[0,1] op_sel_hi:[1,0] neg_lo:[0,1]")
def cmul(a, d, x, w, conj=False):
    assert d != x
    if NPK[0]:
        a(f"v_mul_f32 v{d}, v{x}, v{w}"); a(f"v_mul_f32 v{d+1}, v{x+1}, v{w}")
        if not conj:
            a(f"v_fma_f32 v{d}, -v{x+1}, v{w+1}, v{d}"); a(f"v_fmac_f32 v{d+1}, v{x}, v{w+1}")
        else:
            a(f"v_fmac_f32 v{d}, v{x+1}, v{w+1}"); a(f"v_fma_f32 v{d+1}, -v{x}, v{w+1}, v{d+1}")
        return
    a(f"v_pk_mul_f32 {P(d)}, {P(x)}, {P(w)} op_sel:[0,0] op_sel_hi:[1,0]")
    if not conj:
        a(f"v_pk_fma_f32 {P(d)}, {P(x)}, {P(w)}, {P(d)} op_sel:[1,1,0] op_sel_hi:[0,1,1] neg_lo:[1,0,0]")
    else:
        a(f"v_pk_fma_f32 {P(d)}, {P(x)}, {P(w)}, {P(d)} op_sel:[1,1,0] op_sel_hi:[0,1,1] neg_hi:[1,0,0]")
def cscale(a, d, x, sR, neg=False):
    if NPK[0]:
        if neg:
            a(f"v_mul_f32 v{d}, -v{x}, s{sR}"); a(f"v_mul_f32 v{d+1}, -v{x+1}, s{sR}")
        else:
            a(f"v_mul_f32 v{d}, s{sR}, v{x}"); a(f"v_mul_f32 v{d+1}, s{sR}, v{x+1}")
    else:
        a(f"v_pk_mul_f32 {P(d)}, {P(x)}, s[{sR}:{sR+1}]" + (" neg_lo:[1,0] neg_hi:[1,0]" if neg else ""))

def bfly8(a, A, B, sR, inv=False):
    mi = cadd_pi if inv else cadd_mi
    pi_ = cadd_mi if inv else cadd_pi
    for j in range(4):
        cadd(a, B[j], A[j], A[j+4])
        csub(a, B[j+4], A[j], A[j+4])
    mi(a, A[0], B[5], B[5])
    cscale(a, B[5], A[0], sR)
    pi_(a, A[1], B[7], B[7])
    cscale(a, B[7], A[1], sR, neg=True)
    cadd(a, A[0], B[0], B[2]); csub(a, A[1], B[0], B[2])
    cadd(a, A[2], B[1], B[3]); csub(a, A[3], B[1], B[3])
    mi(a, A[4], B[4], B[6]); pi_(a, A[5], B[4], B[6])
    cadd(a, A[6], B[5], B[7]); csub(a, A[7], B[5], B[7])
    cadd(a, B[0], A[0], A[2]); csub(a, B[4], A[0], A[2])
    mi(a, B[2], A[1], A[3]); pi_(a, B[6], A[1], A[3])
    cadd(a, B[1], A[4], A[6]); csub(a, B[5], A[4], A[6])
    mi(a, B[3], A[5], A[7]); pi_(a, B[7], A[5], A[7])

def bfly4(a, A, B, inv=False):
    mi = cadd_pi if inv else cadd_mi
    pi_ = cadd_mi if inv else cadd_pi
    cadd(a, B[0], A[0], A[2]); csub(a, B[1], A[0], A[2])
    cadd(a, B[2], A[1], A[3]); csub(a, B[3], A[1], A[3])
    cadd(a, A[0], B[0], B[2]); csub(a, A[2], B[0], B[2])
    mi(a, A[1], B[1], B[3]); pi_(a, A[3], B[1], B[3])

def wave_sum(a, r, sdst):
    for sh in (1, 2, 4, 8):
        a(f"v_add_f32_dpp v{r}, v{r}, v{r} row_shr:{sh} row_mask:0xf bank_mask:0xf bound_ctrl:0")
    a(f"v_add_f32_dpp v{r}, v{r}, v{r} row_bcast:15 row_mask:0xa bank_mask:0xf")
    a(f"v_add_f32_dpp v{r}, v{r}, v{r} row_bcast:31 row_mask:0xc bank_mask:0xf")
    a(f"v_readlane_b32 s{sdst}, v{r}, 63")

T_R1 = 0; T_R2 = 4096; T_C1 = 4608; T_C2 = 20992; T_C3 = 23040; TAB_SIZE = 23296
def twiddle_table():
    out = [".p2align 8", ".type TWTAB,@object", "TWTAB:"]
    def w(N, j):
        th = 2*math.pi*(j % N)/N
        return f"{fhex(math.cos(th))}, {fhex(-math.sin(th))}"
    for (N, cnt) in ((512, 64), (64, 8), (2048, 256), (256, 32), (32, 4)):
        for q in range(4):
            for l in range(cnt):
                out.append(f".long {w(N, l*2*q)}, {w(N, l*(2*q+1))}")
    out.append(f".size TWTAB, {TAB_SIZE}")
    return "\n".join(out) + "\n"

def load_tw(a, dst, vaddr, srd, base, cnt):
    for q in range(4):
        off = base + q*cnt*16
        if off < 4096:
            a(f"buffer_load_dwordx4 v[{dst+4*q}:{dst+4*q+3}], v{vaddr}, s[{srd}:{srd+3}], 0 offen offset:{off}")
        else:
            a(f"s_mov_b32 s3, {off}")
            a(f"buffer_load_dwordx4 v[{dst+4*q}:{dst+4*q+3}], v{vaddr}, s[{srd}:{srd+3}], s3 offen")

def kernel_desc(name, vgpr, sgpr=102):
    acc = (vgpr + 3)//4*4
    return f""".amdhsa_kernel {name}
  .amdhsa_next_free_vgpr {vgpr}
  .amdhsa_next_free_sgpr {sgpr}
  .amdhsa_accum_offset {acc}
  .amdhsa_group_segment_fixed_size 0
  .amdhsa_kernarg_size 80
  .amdhsa_user_sgpr_count 2
  .amdhsa_user_sgpr_kernarg_segment_ptr 1
  .amdhsa_system_sgpr_workgroup_id_x 1
.end_amdhsa_kernel
"""

def kcol(t, r):
    k0 = t >> 5; k1 = (t >> 2) & 7; k2h = t & 3
    k2l = r >> 2; k3 = r & 3
    return k0 + 8*k1 + 64*(2*k2h + k2l) + 512*k3

import os
STAMP = os.environ.get("STAMP", "")
RTALL = os.environ.get("RTALL", "")
def _rtsel(kern):
    parts = RTALL.split(";")
    return [int(x) for x in parts[0 if kern == "k1" else 1].split(",")]
RT0 = os.environ.get("RT0", "")
def stamp(a, i, kern):
    if RT0 and kern == "k0":
        a(f"s_memrealtime s[{80+2*i}:{81+2*i}]")
        return
    if RTALL and kern in ("k1", "k2"):
        sel = _rtsel(kern)
        if i in sel: a(f"s_memrealtime s[{80+2*sel.index(i)}:{81+2*sel.index(i)}]")
        return
    if STAMP == kern: a(f"s_memtime s[{80+2*i}:{81+2*i}]")
_sfc = [0]
def stamp_flush(a, n, kern, wg):
    if RT0 and kern == "k0":
        a("s_waitcnt vmcnt(0) lgkmcnt(0)")
        a(f"s_memrealtime s[{80+2*n}:{81+2*n}]")
        a("s_load_dwordx2 s[76:77], s[0:1], 64")
        a("s_waitcnt lgkmcnt(0)")
        srd_from_ptr(a, 76, 76, 65536)
        a("v_lshrrev_b32 v1, 6, v0"); a("v_lshlrev_b32 v1, 5, v1")
        a("s_lshl_b32 s3, s2, 8")
        if os.environ.get("K0V2") == "1":
            a("s_lshl_b32 s48, s48, 7"); a("s_add_u32 s3, s3, s48")
        for i in range(n+1):
            a(f"v_mov_b32 v2, s{80+2*i}")
            a(f"buffer_store_dword v2, v1, s[76:79], s3 offen offset:{4*i}")
        return
    if RTALL and kern in ("k1", "k2"):
        sel = _rtsel(kern); m = len(sel)
        a("s_waitcnt vmcnt(0) lgkmcnt(0)")
        a(f"s_memrealtime s[{80+2*m}:{81+2*m}]")
        a("s_load_dwordx2 s[76:77], s[0:1], 64")
        a("s_waitcnt lgkmcnt(0)")
        srd_from_ptr(a, 76, 76, 65536)
        a("v_lshrrev_b32 v1, 6, v0"); a("v_lshlrev_b32 v1, 5, v1")
        a("s_lshl_b32 s3, s2, 7")
        if kern == "k2": a("s_add_u32 s3, s3, 32768")
        for i in range(m+1):
            a(f"v_mov_b32 v2, s{80+2*i}")
            a(f"buffer_store_dword v2, v1, s[76:79], s3 offen offset:{4*i}")
        return
    if STAMP != kern: return
    a("s_waitcnt vmcnt(0) lgkmcnt(0)")
    a(f"s_memtime s[{80+2*n}:{81+2*n}]")
    a("s_load_dwordx2 s[76:77], s[0:1], 64")
    a("s_waitcnt lgkmcnt(0)")
    a(f"s_cmp_eq_u32 s2, {wg}")
    _sfc[0] += 1
    a(f"s_cbranch_scc0 L_nostamp_{kern}{_sfc[0]}")
    srd_from_ptr(a, 76, 76, 512)
    a("v_lshrrev_b32 v1, 6, v0"); a("v_and_b32 v1, 7, v1"); a("v_lshlrev_b32 v1, 6, v1")
    for i in range(n+1):
        a(f"s_sub_u32 s3, s{80+2*i}, s80")
        a("v_mov_b32 v2, s3")
        a(f"buffer_store_dword v2, v1, s[76:79], 0 offen offset:{4*i}")
    a.label(f"L_nostamp_{kern}{_sfc[0]}")
```

```python
from gen_common import *
R2 = 1.0/math.sqrt(2.0)

def xcd_pair(a, dst, src):
    a(f"s_lshr_b32 s3, s{src}, 3"); a("s_and_b32 s3, s3, 1")
    a(f"s_and_b32 s{dst+1}, s{src}, 7"); a(f"s_lshl_b32 s{dst+1}, s{dst+1}, 1"); a(f"s_or_b32 s3, s3, s{dst+1}")
    a(f"s_and_b32 s{dst+1}, s{src}, 0xf0"); a(f"s_or_b32 s{dst}, s3, s{dst+1}")

K2_X1F = 0; K2_XW = 16384; K2_X1I = 36864; K2_COL_LDS = 53248

def k2_col_role(a, cont=None):
    A = [8+2*i for i in range(8)]; B = [24+2*i for i in range(8)]
    TW1 = [40+2*i for i in range(8)]; TW2 = [56+2*i for i in range(8)]; TW3 = [72+2*i for i in range(8)]
    WW = 88
    W2 = 112
    stamp(a, 0, "k2")
    a("s_load_dwordx2 s[12:13], s[0:1], 72")
    L2PF = int(os.environ.get("L2PF", "0"))
    if os.environ.get("NOF") == "1": a("s_endpgm")
    if L2PF: a("s_load_dwordx4 s[40:43], s[0:1], 32")
    xcd_pair(a, 14, 2)
    if cont is not None: a("s_xor_b32 s14, s14, 255")
    srd_table(a, 20, "L_k2_pc")
    a(f"s_mov_b32 s48, {fhex(R2)}"); a(f"s_mov_b32 s49, {fhex(R2)}")
    a("v_lshlrev_b32 v3, 3, v0")
    a("v_lshlrev_b32 v4, 4, v0")
    a("v_and_b32 v5, 31, v0"); a("v_lshlrev_b32 v6, 4, v5")
    a("v_and_b32 v101, 3, v0"); a("v_lshlrev_b32 v7, 4, v101")
    load_tw(a, TW1[0], 4, 20, T_C1, 256)
    a("v_lshrrev_b32 v96, 3, v0"); a(f"v_mul_u32_u24 v96, {RS}, v96"); a("v_and_b32 v97, 7, v0"); a("v_lshlrev_b32 v97, 3, v97"); a("v_add_u32 v96, v96, v97")
    a("s_waitcnt lgkmcnt(0)")
    stamp(a, 1, "k2")
    srd_from_ptr(a, 24, 12, SZ_Y1T, WS_Y1T)
    a("s_lshl_b32 s50, s14, 6")
    for j in range(8):
        a(f"buffer_load_dwordx2 {P(A[j])}, v96, s[24:27], s50 offen")
        if j < 7: a(f"s_add_u32 s50, s50, {32*RS}")
    FDEF = os.environ.get("FDEF") == "1"
    def late_loads():
        load_tw(a, TW2[0], 6, 20, T_C2, 32)
        load_tw(a, TW3[0], 7, 20, T_C3, 4)
        a("v_lshlrev_b32 v107, 5, v0")
        a(f"buffer_load_dwordx4 v[{WW}:{WW+3}], v107, s[36:39], s51 offen")
        a(f"buffer_load_dwordx4 v[{WW+4}:{WW+7}], v107, s[36:39], s51 offen offset:16")
        if FDEF:
            a("s_cmp_lg_u32 s14, 0"); a("s_cbranch_scc1 L_k2_now2")
        a("s_mov_b32 s52, 0x200000")
        a(f"buffer_load_dwordx4 v[{W2}:{W2+3}], v107, s[36:39], s52 offen")
        a(f"buffer_load_dwordx4 v[{W2+4}:{W2+7}], v107, s[36:39], s52 offen offset:16")
        if FDEF: a.label("L_k2_now2")
        a("v_add_u32 v6, 0x1000, v3"); a("v_add_u32 v7, 0x2000, v3"); a("v_add_u32 v105, 0x3000, v3")
    srd_from_ptr(a, 28, 12, SZ_Y2T, WS_Y2T)
    srd_from_ptr(a, 36, 12, SZ_WT, WS_WT)
    a(f"s_mul_i32 s50, s14, {CSTR}")
    AV = [3, 6, 7, 105]
    a("s_lshl_b32 s51, s14, 13")
    NPF = 0
    def l2pf():
        srd_from_ptr(a, 64, 40, 512*2752)
        srd_from_ptr(a, 68, 42, 512*2752)
        srd_from_ptr(a, 72, 12, 2048*1024, 0x1700000)
        a("v_lshrrev_b32 v160, 6, v0"); a("s_lshr_b32 s3, s2, 3"); a("s_lshl_b32 s3, s3, 2"); a("v_add_u32 v160, s3, v160")
        a("v_bfe_u32 v161, v0, 4, 2"); a("v_lshl_add_u32 v161, v160, 2, v161"); a("v_mul_u32_u24 v161, 2752, v161")
        a("v_and_b32 v162, 15, v0"); a("v_lshlrev_b32 v162, 7, v162")
        a("s_and_b32 s3, s2, 4"); a("s_cmp_eq_u32 s3, 0"); a("s_movk_i32 s44, 1532"); a("s_cselect_b32 s44, s44, 1212"); a("s_mul_i32 s3, s3, 384")
        a("v_min_u32 v162, s44, v162"); a("v_add_u32 v161, v161, v162")
        a("v_and_b32 v162, 31, v0"); a("v_lshlrev_b32 v162, 7, v162"); a("v_lshl_add_u32 v162, v160, 12, v162")
        a("s_and_b32 s44, s2, 3"); a("s_lshl_b32 s44, s44, 19")
        a("buffer_load_dword v163, v161, s[64:67], s3 offen")
        a("buffer_load_dword v164, v161, s[68:71], s3 offen")
        a("buffer_load_dword v165, v162, s[72:75], s44 offen")
    if L2PF == 2: l2pf()
    if not FDEF: late_loads()
    if L2PF == 1:
        assert not FDEF
        l2pf(); NPF = 3
    a("v_lshrrev_b32 v106, 5, v0")
    a("v_lshlrev_b32 v96, 8, v106"); a("v_add_u32 v96, v96, v5"); a("v_lshlrev_b32 v96, 3, v96")
    a("v_lshrrev_b32 v97, 6, v0"); a("v_mul_u32_u24 v97, 5120, v97"); a(f"v_add_u32 v97, {K2_XW}, v97")
    a("v_and_b32 v98, 1, v106"); a("v_mul_u32_u24 v98, 288, v98")
    a("v_add_u32 v99, v98, v5"); a("v_lshlrev_b32 v99, 3, v99"); a("v_add_u32 v99, v99, v97")
    a("v_lshrrev_b32 v100, 2, v5"); a("v_mul_u32_u24 v100, 36, v100")
    a("v_add_u32 v100, v100, v101"); a("v_add_u32 v100, v100, v98"); a("v_lshlrev_b32 v100, 3, v100"); a("v_add_u32 v100, v100, v97")
    a("v_and_b32 v102, 63, v0"); a("v_lshrrev_b32 v102, 2, v102"); a("v_mul_u32_u24 v102, 20, v102")
    a("v_mul_u32_u24 v103, 5, v101"); a("v_add_u32 v103, v103, v102"); a("v_lshlrev_b32 v103, 4, v103"); a("v_add_u32 v103, v103, v97")
    a("v_add_u32 v104, v102, v101"); a("v_lshlrev_b32 v104, 4, v104"); a("v_add_u32 v104, v104, v97")
    stamp(a, 2, "k2")
    a(f"s_waitcnt vmcnt({(0 if FDEF else 12) + (3 if L2PF else 0)})")
    stamp(a, 3, "k2")
    if FDEF: late_loads()
    bfly8(a, A, B, 48)
    for k in range(1, 8): cmul(a, A[k], B[k], TW1[k])
    a(f"ds_write_b64 v3, {P(B[0])} offset:{K2_X1F}")
    for k in range(1, 8): a(f"ds_write_b64 v3, {P(A[k])} offset:{K2_X1F+2048*k}")
    a("s_waitcnt lgkmcnt(0)"); a("s_barrier")
    for n2 in range(8): a(f"ds_read_b64 {P(A[n2])}, v96 offset:{K2_X1F+256*n2}")
    stamp(a, 4, "k2")
    a(f"s_waitcnt vmcnt({(2 if FDEF else 4) + NPF}) lgkmcnt(0)")
    stamp(a, 5, "k2")
    bfly8(a, A, B, 48)
    for k in range(1, 8): cmul(a, A[k], B[k], TW2[k])
    a(f"ds_write_b64 v99, {P(B[0])}")
    for k in range(1, 8): a(f"ds_write_b64 v99, {P(A[k])} offset:{288*k}")
    for n1 in range(8): a(f"ds_read_b64 {P(A[n1])}, v100 offset:{32*n1}")
    a("s_waitcnt lgkmcnt(0)")
    bfly8(a, A, B, 48)
    a(f"v_mov_b32 v{A[0]}, v{B[0]}"); a(f"v_mov_b32 v{A[0]+1}, v{B[0]+1}")
    for k in range(1, 8): cmul(a, A[k], B[k], TW3[k])
    for q in range(4): a(f"ds_write_b128 v103, v[{A[2*q]}:{A[2*q]+3}] offset:{16*q}")
    for n0 in range(4): a(f"ds_read_b128 v[{B[2*n0]}:{B[2*n0]+3}], v104 offset:{80*n0}")
    a("s_waitcnt lgkmcnt(0)")
    E = [B[0], B[2], B[4], B[6]]; O = [B[1], B[3], B[5], B[7]]
    bfly4(a, E, A[0:4]); bfly4(a, O, A[4:8])
    Zr = E + O
    PR = [A[0], A[2], A[4], A[6], A[1], A[3], A[5], A[7]]
    a(f"s_waitcnt vmcnt({NPF})")
    a("s_cmp_eq_u32 s14, 0")
    a("s_cbranch_scc1 L_k2_special")
    for r in range(8):
        t = 108 + 2*(r & 1)
        a(f"v_lshlrev_b32 v{t}, 16, v{WW+r}"); a(f"v_and_b32 v{t+1}, 0xffff0000, v{WW+r}")
        cmul(a, PR[r], Zr[r], t)
    a.label("L_k2_back")
    stamp(a, 6, "k2")
    bfly4(a, PR[0:4], B[0:4], inv=True); bfly4(a, PR[4:8], B[4:8], inv=True)
    for n0 in range(4): a(f"ds_write_b128 v104, v[{A[2*n0]}:{A[2*n0]+3}] offset:{80*n0}")
    for q in range(4): a(f"ds_read_b128 v[{B[2*q]}:{B[2*q]+3}], v103 offset:{16*q}")
    a("s_waitcnt lgkmcnt(0)")
    a(f"v_mov_b32 v{A[0]}, v{B[0]}"); a(f"v_mov_b32 v{A[0]+1}, v{B[0]+1}")
    for k in range(1, 8): cmul(a, A[k], B[k], TW3[k], conj=True)
    bfly8(a, A, B, 48, inv=True)
    for n1 in range(8): a(f"ds_write_b64 v100, {P(B[n1])} offset:{32*n1}")
    a(f"ds_read_b64 {P(A[0])}, v99")
    for k in range(1, 8): a(f"ds_read_b64 {P(B[k])}, v99 offset:{288*k}")
    a("s_waitcnt lgkmcnt(0)")
    for k in range(1, 8): cmul(a, A[k], B[k], TW2[k], conj=True)
    bfly8(a, A, B, 48, inv=True)
    for n2 in range(8): a(f"ds_write_b64 v96, {P(B[n2])} offset:{K2_X1I+256*n2}")
    a("s_waitcnt lgkmcnt(0)"); a("s_barrier")
    a(f"ds_read_b64 {P(A[0])}, v3 offset:{K2_X1I}")
    for k in range(1, 8): a(f"ds_read_b64 {P(B[k])}, v3 offset:{K2_X1I+2048*k}")
    a("s_waitcnt lgkmcnt(0)")
    for k in range(1, 8): cmul(a, A[k], B[k], TW1[k], conj=True)
    bfly8(a, A, B, 48, inv=True)
    stamp(a, 7, "k2")
    for j in range(8):
        a(f"buffer_store_dwordx2 {P(B[j])}, v{AV[j//2]}, s[28:31], s50 offen offset:{2048*(j&1)}")
    if cont is not None: cont(a)
    else:
        stamp_flush(a, 8, "k2", 5)
        a("s_endpgm")
    a.label("L_k2_special")
    a("v_lshrrev_b32 v108, 2, v0"); a("v_and_b32 v108, 7, v108"); a("v_lshlrev_b32 v108, 3, v108")
    a("v_add_u32 v108, v108, v106"); a("v_lshlrev_b32 v109, 7, v101"); a("v_add_u32 v108, v108, v109")
    a("s_barrier")
    a("v_lshlrev_b32 v109, 4, v108")
    for r in range(8):
        ko = 64*(r >> 2) + 512*(r & 3)
        a(f"v_mov_b32 v120, v{Zr[r]}"); a(f"v_mov_b32 v121, v{Zr[r]+1}"); a(f"v_mov_b32 v122, v{WW+r}"); a(f"v_mov_b32 v123, v{W2+r}")
        a(f"ds_write_b128 v109, v[120:123] offset:{16*ko}")
    a("s_waitcnt lgkmcnt(0)"); a("s_barrier")
    M = 128
    for r in range(8):
        ko = 64*(r >> 2) + 512*(r & 3)
        a(f"v_sub_u32 v109, {2048-ko}, v108"); a("v_and_b32 v109, 2047, v109"); a("v_lshlrev_b32 v109, 4, v109")
        a(f"ds_read_b128 v[{M+4*r}:{M+4*r+3}], v109")
    a("s_waitcnt lgkmcnt(0)"); a("s_barrier")
    for r in range(8):
        m = M + 4*r
        a(f"v_lshlrev_b32 v108, 16, v{WW+r}"); a(f"v_and_b32 v109, 0xffff0000, v{WW+r}")
        a(f"v_lshlrev_b32 v110, 16, v{W2+r}"); a(f"v_and_b32 v111, 0xffff0000, v{W2+r}")
        a(f"v_lshlrev_b32 v120, 16, v{m+2}"); a(f"v_and_b32 v121, 0xffff0000, v{m+2}")
        a(f"v_lshlrev_b32 v122, 16, v{m+3}"); a(f"v_and_b32 v123, 0xffff0000, v{m+3}")
        a("v_pk_add_f32 v[108:109], v[108:109], v[120:121] neg_hi:[0,1]")
        a("v_pk_add_f32 v[110:111], v[110:111], v[122:123] neg_hi:[0,1]")
        cadd(a, 120, 108, 110); csub(a, 122, 108, 110)
        for q in range(4): a(f"v_mul_f32 v{120+q}, 0.25, v{120+q}")
        cmul(a, PR[r], Zr[r], 120)
        cmul(a, 124, 122, m, conj=True)
        cadd(a, PR[r], PR[r], 124)
    a("s_branch L_k2_back")

RQ = 5152
K3_LDS = 4*RQ
def k3_role(a):
    A = [8+2*i for i in range(8)]; B = [24+2*i for i in range(8)]
    TW1 = [40+2*i for i in range(8)]; TW2 = [56+2*i for i in range(8)]
    Y = 72
    XV = 104; GV = 112
    stamp(a, 0, "k3")
    a("s_load_dwordx2 s[4:5], s[0:1], 0")
    a("s_load_dwordx2 s[6:7], s[0:1], 56")
    a("s_load_dwordx2 s[12:13], s[0:1], 72")
    xcd_pair(a, 14, 2)
    srd_table(a, 20, "L_k3_pc")
    a(f"s_mov_b32 s48, {fhex(R2)}"); a(f"s_mov_b32 s49, {fhex(R2)}")
    a("v_and_b32 v1, 63, v0")
    a("v_lshrrev_b32 v2, 6, v0")
    a("v_readfirstlane_b32 s50, v2")
    a("v_lshrrev_b32 v5, 3, v1"); a("v_and_b32 v6, 7, v1")
    a("v_lshlrev_b32 v3, 4, v1"); a("v_lshlrev_b32 v4, 4, v6")
    load_tw(a, TW2[0], 4, 20, T_R2, 8)
    load_tw(a, TW1[0], 3, 20, T_R1, 64)
    a("s_lshl_b32 s51, s14, 3"); a("s_lshl_b32 s52, s50, 1"); a("s_add_u32 s51, s51, s52")
    a("v_lshrrev_b32 v120, 2, v0"); a("v_and_b32 v121, 3, v0")
    a(f"v_mul_u32_u24 v122, {CSTR}, v120"); a("v_lshlrev_b32 v123, 4, v121"); a("v_add_u32 v122, v122, v123")
    a("s_waitcnt lgkmcnt(0)")
    stamp(a, 1, "k3")
    srd_from_ptr(a, 28, 12, SZ_Y2T, WS_Y2T)
    a("s_lshl_b32 s53, s14, 6")
    for i in range(4):
        a(f"buffer_load_dwordx4 v[{Y+4*i}:{Y+4*i+3}], v122, s[28:31], s53 offen")
        if i < 3: a(f"s_add_u32 s53, s53, {64*CSTR}")
    srd_from_ptr(a, 16, 4, 2048*1024)
    srd_from_ptr(a, 24, 6, 2048*1024)
    srd_from_ptr(a, 32, 12, SZ_G, WS_G)
    a("s_lshl_b32 s55, s51, 10")
    a(f"buffer_load_dwordx4 v[{XV}:{XV+3}], v3, s[16:19], s55 offen")
    a(f"buffer_load_dwordx4 v[{XV+4}:{XV+7}], v3, s[16:19], s55 offen offset:1024")
    a(f"buffer_load_dwordx4 v[{GV}:{GV+3}], v3, s[32:35], s55 offen")
    a(f"buffer_load_dwordx4 v[{GV+4}:{GV+7}], v3, s[32:35], s55 offen offset:1024")
    a("v_lshrrev_b32 v123, 3, v120"); a("v_add_u32 v123, v123, v120"); a("v_lshlrev_b32 v123, 4, v123")
    a(f"v_mul_u32_u24 v124, {RQ}, v121"); a("v_add_u32 v123, v123, v124")
    a(f"s_mul_i32 s61, s50, {RQ}")
    a("v_mul_u32_u24 v124, 9, v6"); a("v_add_u32 v125, v124, v5"); a("v_lshlrev_b32 v125, 4, v125"); a("v_add_u32 v125, s61, v125")
    a("v_lshlrev_b32 v7, 3, v6"); a("v_add_u32 v7, v7, v5")
    a("v_sub_u32 v126, 64, v7"); a("v_lshrrev_b32 v127, 3, v126"); a("v_add_u32 v126, v126, v127"); a("v_lshlrev_b32 v126, 4, v126"); a("v_add_u32 v126, s61, v126")
    a("v_sub_u32 v127, 256, v7"); a("v_and_b32 v127, 255, v127"); a("v_lshrrev_b32 v128, 3, v127"); a("v_add_u32 v127, v127, v128"); a("v_lshlrev_b32 v127, 4, v127"); a("v_add_u32 v127, s61, v127")
    a("v_lshlrev_b32 v129, 3, v1"); a("v_add_u32 v129, s61, v129")
    a("v_mul_u32_u24 v130, 72, v5"); a("v_add_u32 v131, v130, v6"); a("v_lshlrev_b32 v131, 3, v131"); a("v_add_u32 v131, s61, v131")
    a("v_add_u32 v132, v124, v130"); a("v_lshlrev_b32 v132, 3, v132"); a("v_add_u32 v132, s61, v132")
    a("v_lshlrev_b32 v133, 4, v5"); a("v_add_u32 v133, v133, v129")
    a("v_mul_u32_u24 v134, 80, v1"); a("v_add_u32 v134, s61, v134")
    stamp(a, 2, "k3")
    a("s_waitcnt vmcnt(4)")
    stamp(a, 3, "k3")
    for i in range(4): a(f"ds_write_b128 v123, v[{Y+4*i}:{Y+4*i+3}] offset:{72*16*i}")
    a("s_waitcnt lgkmcnt(0)"); a("s_barrier")
    for k2 in range(4): a(f"ds_read_b128 v[{Y+4*k2}:{Y+4*k2+3}], v125 offset:{72*16*k2}")
    a(f"ds_read_b128 v[{Y+16}:{Y+19}], v127")
    for k2 in range(5, 8): a(f"ds_read_b128 v[{Y+4*k2}:{Y+4*k2+3}], v126 offset:{72*16*(7-k2)}")
    a("s_waitcnt lgkmcnt(0)")
    stamp(a, 4, "k3")
    for k2 in range(4):
        y = Y + 4*k2
        cadd_pi(a, A[k2], y, y+2)
    for k2 in range(4, 8):
        y = Y + 4*k2
        a(f"v_pk_add_f32 {P(A[k2])}, {P(y)}, {P(y+2)} op_sel:[0,1] op_sel_hi:[1,0] neg_hi:[1,0]")
    a("v_cmp_eq_u32 vcc, 0, v1")
    a(f"v_cndmask_b32 v{A[0]}, v{A[0]}, v{Y}, vcc"); a(f"v_cndmask_b32 v{A[0]+1}, v{A[0]+1}, v{Y+2}, vcc")
    a(f"v_cndmask_b32 v{A[4]}, v{A[4]}, v{Y+17}, vcc"); a(f"v_cndmask_b32 v{A[4]+1}, v{A[4]+1}, v{Y+19}, vcc")
    bfly8(a, A, B, 48, inv=True)
    for n0 in range(8): a(f"ds_write_b64 v132, {P(B[n0])} offset:{8*n0}")
    a(f"ds_read_b64 {P(A[0])}, v131")
    for k in range(1, 8): a(f"ds_read_b64 {P(B[k])}, v131 offset:{72*k}")
    a("s_waitcnt lgkmcnt(0)")
    for k in range(1, 8): cmul(a, A[k], B[k], TW2[k], conj=True)
    bfly8(a, A, B, 48, inv=True)
    for n1 in range(8): a(f"ds_write_b64 v131, {P(B[n1])} offset:{64*n1}")
    a(f"ds_read_b64 {P(A[0])}, v129")
    for k in range(1, 8): a(f"ds_read_b64 {P(B[k])}, v129 offset:{576*k}")
    a("s_waitcnt lgkmcnt(0)")
    for k in range(1, 8): cmul(a, A[k], B[k], TW1[k], conj=True)
    bfly8(a, A, B, 48, inv=True)
    for j in range(8): a(f"ds_write_b64 v133, {P(B[j])} offset:{640*j}")
    for q in range(4): a(f"ds_read_b128 v[{A[2*q]}:{A[2*q]+3}], v134 offset:{16*q}")
    sc = 1.0/(2*2048*512)
    a(f"s_mov_b32 s46, {fhex(sc)}"); a(f"s_mov_b32 s47, {fhex(sc)}")
    a("s_waitcnt vmcnt(0) lgkmcnt(0)")
    stamp(a, 5, "k3")
    for e in range(8): a(f"v_pk_mul_f32 {P(A[e])}, {P(A[e])}, s[46:47]")
    OUT = 120
    for row in range(2):
        for q in range(4):
            e0, e1 = A[2*q]+row, A[2*q+1]+row
            t = 40 + 8*(q & 1)
            a(f"v_cvt_pk_bf16_f32 v{t}, v{e0}, v{e1}")
            a(f"v_lshlrev_b32 v{t+2}, 16, v{t}"); a(f"v_and_b32 v{t+3}, 0xffff0000, v{t}")
            g = GV + 4*row + q; x = XV + 4*row + q
            a(f"v_lshlrev_b32 v{t+4}, 16, v{g}"); a(f"v_and_b32 v{t+5}, 0xffff0000, v{g}")
            a(f"v_pk_mul_f32 {P(t+2)}, {P(t+2)}, {P(t+4)}")
            a(f"v_cvt_pk_bf16_f32 v{t}, v{t+2}, v{t+3}")
            a(f"v_lshlrev_b32 v{t+2}, 16, v{t}"); a(f"v_and_b32 v{t+3}, 0xffff0000, v{t}")
            a(f"v_lshlrev_b32 v{t+4}, 16, v{x}"); a(f"v_and_b32 v{t+5}, 0xffff0000, v{x}")
            a(f"v_pk_add_f32 {P(t+2)}, {P(t+2)}, {P(t+4)}")
            a(f"v_cvt_pk_bf16_f32 v{OUT+4*row+q}, v{t+2}, v{t+3}")
    stamp(a, 6, "k3")
    a(f"buffer_store_dwordx4 v[{OUT}:{OUT+3}], v3, s[24:27], s55 offen")
    a(f"buffer_store_dwordx4 v[{OUT+4}:{OUT+7}], v3, s[24:27], s55 offen offset:1024")
    stamp_flush(a, 7, "k3", 5)
    a("s_endpgm")
```

```python
from gen_common import *
from gen_n0 import *
import gen_n1
from gen_n1 import k1_epilogue_unit, C1, C2, HS, NSLOT, ACC, AF, XR, NXR, VWD, VB

SLP = int(os.environ.get('SLP', '4'))
PH = os.environ.get('PH', 'sc0 sc1'); PY = os.environ.get('PY', 'sc0 sc1'); PS = os.environ.get('PS', 'sc0 sc1')
YSTR = 256; LEAD = 30
NORD = os.environ.get('NORD') == '1'
WRING = 18432; NWS = 9
M_LDS = NSLOT*HS
M_VGPR = 208
NS = 22
PD = 8

def g_role(a):
    stamp(a, 0, "k1")
    if os.environ.get("GP0") == "1": a("s_setprio 3")
    a("s_load_dwordx2 s[10:11], s[0:1], 32"); a("s_load_dwordx2 s[12:13], s[0:1], 40")
    a("s_load_dwordx2 s[16:17], s[0:1], 72")
    a("s_load_dwordx2 s[14:15], s[0:1], 48")
    a("s_load_dwordx2 s[4:5], s[0:1], 0")
    a("s_load_dwordx2 s[6:7], s[0:1], 56")
    a("s_and_b32 s70, s2, 3"); a("s_lshl_b32 s70, s70, 2"); a("s_lshr_b32 s3, s2, 3"); a("s_and_b32 s3, s3, 3"); a("s_add_u32 s70, s70, s3")
    a("s_and_b32 s71, s2, 4"); a("s_lshl_b32 s71, s71, 1"); a("s_lshr_b32 s3, s2, 5"); a("s_add_u32 s71, s71, s3")
    a("v_and_b32 v1, 63, v0")
    a("v_lshrrev_b32 v2, 6, v0")
    a("v_readfirstlane_b32 s50, v2")
    a("v_lshlrev_b32 v3, 4, v1")
    for p in range(3):
        a(f"v_add_u32 v{VWD+p}, {p*64}, v1")
        a(f"v_mul_u32_u24 v5, 0x5556, v{VWD+p}"); a("v_lshrrev_b32 v5, 18, v5")
        a(f"v_mul_u32_u24 v6, 12, v5"); a(f"v_sub_u32 v6, v{VWD+p}, v6")
        a(f"v_mul_u32_u24 v5, 2752, v5"); a(f"v_lshl_add_u32 v{VWD+p}, v6, 4, v5")
    a("s_lshr_b32 s55, s50, 1")
    a("s_and_b32 s56, s50, 1")
    a(f"s_mul_i32 s57, s56, {16*2752}")
    a("s_mul_i32 s59, s71, 6"); a("s_min_u32 s59, s59, 80"); a("s_lshl_b32 s60, s59, 5"); a("s_add_u32 s57, s57, s60")
    a("s_mul_i32 s58, s55, 6176"); a("s_mul_i32 s60, s56, 3072"); a("s_add_u32 s58, s58, s60")
    a("s_lshl_b32 s54, s70, 2"); a("s_add_u32 s54, s54, s50")
    a("s_lshl_b32 s53, s54, 15")
    a("v_lshrrev_b32 v5, 4, v1"); a("v_and_b32 v6, 1, v5"); a("v_lshrrev_b32 v5, 1, v5")
    a("v_and_b32 v7, 15, v1"); a("v_lshrrev_b32 v13, 2, v7"); a("v_and_b32 v7, 3, v7")
    a("v_lshlrev_b32 v16, 9, v5"); a("v_lshl_add_u32 v16, v13, 6, v16"); a("v_lshl_add_u32 v16, v6, 5, v16"); a("v_lshl_add_u32 v16, v7, 3, v16")
    a(f"s_mul_i32 s62, s50, {WRING}"); a("v_add_u32 v16, s62, v16")
    a("v_lshl_add_u32 v5, v5, 3, v13"); a("v_mul_u32_u24 v5, 192, v5"); a("v_mul_u32_u24 v6, 6176, v6"); a("v_add_u32 v5, v5, v6")
    a(f"v_lshl_add_u32 v{VB}, v7, 3, v5")
    a(f"v_add_u32 v{VB+1}, {3*HS}, v{VB}")
    a("v_lshrrev_b32 v5, 5, v1"); a("v_lshlrev_b32 v17, 12, v5")
    a("v_bfe_u32 v5, v1, 2, 2"); a("v_lshl_add_u32 v17, v5, 10, v17")
    a("v_bfe_u32 v5, v1, 4, 1"); a("v_lshl_add_u32 v17, v5, 6, v17")
    a("v_and_b32 v5, 3, v1"); a("v_lshl_add_u32 v17, v5, 4, v17")
    a("s_and_b32 s51, s2, 3"); a("s_lshl_b32 s51, s51, 3"); a("s_and_b32 s3, s2, 4"); a("s_add_u32 s51, s51, s3")
    a("s_lshr_b32 s3, s2, 3"); a("s_and_b32 s3, s3, 3"); a("s_add_u32 s51, s51, s3")
    a("s_lshr_b32 s52, s2, 5")
    a("s_mul_i32 s63, s50, 22")
    a("s_lshl_b32 s64, s63, 14"); a("s_lshl_b32 s3, s52, 7"); a("s_add_u32 s64, s64, s3")
    a("s_lshl_b32 s65, s63, 16"); a("s_lshl_b32 s3, s51, 11"); a("s_add_u32 s65, s65, s3")
    CONTW = os.environ.get("CONTW") == "1"
    if CONTW:
        for p in range(3): a(f"v_add_u32 v{VWD+p}, {p*1024}, v3")
        a(f"s_mul_i32 s57, s71, {16*6144}"); a("s_min_u32 s57, s57, {13*16*6144}".format()) if False else a(f"s_min_u32 s57, s57, {13*16*6144}")
        a("s_mul_i32 s3, s56, 3072"); a("s_add_u32 s57, s57, s3")
    if os.environ.get("SAMET") == "1":
        a(f"s_mul_i32 s57, s56, {16*2752}"); a("s_lshl_b32 s53, s50, 15")
    a("s_cmp_eq_u32 s55, 0")
    a("s_waitcnt lgkmcnt(0)")
    a("s_cselect_b32 s72, s10, s12"); a("s_cselect_b32 s73, s11, s13")
    a("s_and_b32 s73, s73, 0xffff"); a(f"s_mov_b32 s74, {512*2752}"); a("s_mov_b32 s75, 0x00020000")
    srd_from_ptr(a, 20, 16, SZ_XN, WS_XN)
    srd_from_ptr(a, 76, 16, SZ_H, WS_H)
    srd_from_ptr(a, 24, 14, 1376*1024)
    srd_from_ptr(a, 32, 16, SZ_FLAG, WS_FLAG)
    a("s_cmp_ge_u32 s71, 15"); a("s_cbranch_scc1 L_g_b")
    issued = []
    def w_dma(stage):
        for p in range(3):
            a(f"s_add_u32 m0, s58, {(stage % NSLOT)*HS + p*1024}")
            a(f"buffer_load_dwordx4 v{VWD+p}, s[72:75], s57 offen lds")
            issued.append(("w", stage))
        a(f"s_add_u32 s57, s57, {6144 if CONTW else 32*2752}")
    def x_load(j):
        d = XR + 4*(j % NXR)
        a(f"buffer_load_dwordx4 v[{d}:{d+3}], v3, s[20:23], s53 offen offset:{1024*(j&3)}")
        issued.append(("x", j))
        if (j & 3) == 3: a("s_add_u32 s53, s53, 4096")
    def need(tags):
        last = max(i for i, t in enumerate(issued) if t in tags)
        return len(issued) - 1 - last
    w_dma(0); x_load(0); x_load(1)
    w_dma(1); x_load(2); x_load(3)
    pend = [("w", 2), ("x", 4), ("x", 5), ("w", 3), ("x", 6), ("x", 7), ("w", 4), ("w", 5)]
    a("s_lshl_b32 s59, s59, 16"); a("s_lshl_b32 s60, s54, 10"); a("s_add_u32 s59, s59, s60")
    a(f"v_mov_b32 v14, {fhex(C1)}"); a(f"v_mov_b32 v15, {fhex(C1)}")
    a(f"s_mov_b32 s60, {fhex(C2)}"); a(f"s_mov_b32 s61, {fhex(C2)}")
    def rd(stage, kk, u, buf):
        slot = stage % NSLOT
        base = VB + slot//3
        off = (slot % 3)*HS + kk*3072 + u*32
        d = AF + 24*buf + 4*u
        return [f"ds_read_b64_tr_b16 v[{d}:{d+1}], v{base} offset:{off}", f"ds_read_b64_tr_b16 v[{d+2}:{d+3}], v{base} offset:{off+768}"][:1 if NORD else 2]
    def issue_one():
        if not pend: return
        t = pend.pop(0)
        if t[0] == "w": w_dma(t[1])
        else: x_load(t[1])
    NPRE = int(os.environ.get("NPRE", "3"))
    for i in range(NPRE): issue_one()
    if os.environ.get("GP0") == "1": a("s_setprio 0")
    stamp(a, 1, "k1")
    a(f"s_waitcnt vmcnt({need([('w', 0)])})")
    a("s_barrier")
    stamp(a, 2, "k1")
    for u in range(6):
        for t in rd(0, 0, u, 0): a(t)
    for j in range(32):
        st, kk = j >> 1, j & 1
        nst, nkk = (j+1) >> 1, (j+1) & 1
        for u in range(6):
            if u == 0:
                tags = [("x", j)]
                bar = (kk == 1 and st < 15)
                if bar: tags.append(("w", st+1))
                n = need(tags)
                a(f"s_waitcnt vmcnt({n})")
                if bar:
                    a("s_barrier")
                    if st >= 1 and st+5 < 16: pend.append(("w", st+5))
            if NORD: a(f"s_waitcnt lgkmcnt({5 if j < 31 else 5-u})")
            elif j < 31: a("s_waitcnt lgkmcnt(10)")
            else: a(f"s_waitcnt lgkmcnt({10-2*u})")
            x = XR + 4*(j % NXR); d = AF + 24*(j & 1) + 4*u; c = ACC + 16*u
            cs = "0" if j == 0 else f"v[{c}:{c+15}]"
            if j == 31 and u == 5: a("s_barrier")
            a(f"v_mfma_f32_32x32x16_bf16 v[{c}:{c+15}], v[{d}:{d+3}], v[{x}:{x+3}], {cs}")
            if j < 31:
                for t in rd(nst, nkk, u, (j+1) & 1): a(t)
            if u == 5 and j + NXR < 32: pend.append(("x", j+NXR))
            if u in (0, 2, 5): issue_one()
        if j == 15: stamp(a, 3, "k1")
    assert not pend
    stamp(a, 4, "k1")
    def wd_dma(s):
        sl = s % NWS
        a(f"s_add_u32 m0, s62, {sl*2048}")
        a("buffer_load_dwordx4 v17, s[24:27], s64 offen lds")
        a("s_add_u32 s64, s64, 0x2000")
        a(f"s_add_u32 m0, s62, {sl*2048+1024}")
        a("buffer_load_dwordx4 v17, s[24:27], s64 offen lds")
        a("s_add_u32 s64, s64, 0x2000")
    sched = [2, 2, 2, 1, 1, 1]
    LATEWD = os.environ.get("LATEWD") == "1"
    if LATEWD: sched = [0]*6
    ws = 0
    for u in range(6):
        for q in range(sched[u]): wd_dma(ws); ws += 1
        T = 128 + 24*(u % 3)
        k1_epilogue_unit(a, ACC + 16*u, T)
        a(f"buffer_store_dwordx4 v[{T+16}:{T+19}], v3, s[76:79], s59 offen")
        if u < 5: a("s_add_u32 s59, s59, 0x10000")
    a(f"s_mul_i32 s3, s70, {FSTR}"); a("s_lshl_b32 s59, s71, 2"); a("s_add_u32 s59, s59, s3"); a(f"s_add_u32 s59, s59, {FL_H}")
    a("v_mov_b32 v18, 1"); a("v_mov_b32 v19, 0")
    a("s_waitcnt vmcnt(0)")
    a("s_barrier")
    a("s_cmp_lg_u32 s50, 0"); a("s_cbranch_scc1 L_g_nof")
    a("s_mov_b64 exec, 1")
    a("buffer_store_dword v18, v19, s[32:35], s59 offen")
    a("s_mov_b64 exec, -1")
    a.label("L_g_nof")
    stamp(a, 5, "k1")
    if LATEWD:
        for s in range(NWS): wd_dma(s)
    a("s_branch L_g_b2")
    a.label("L_g_b")
    if os.environ.get("E2"): a("s_endpgm")
    for s in range(NWS): wd_dma(s)
    for i in range(int(os.environ.get("IDLE", "2"))): a("s_sleep 127")
    a.label("L_g_b2")
    gemm_b(a)

def gemm_b(a):
    ACC = 8
    HB = 72
    AB = 136
    XV = 152; SV = 160
    VT = 168; VD = 169; VG = 170; VL = 171; VF = 172; VP = 173
    a(f"v_mov_b32 v{VT}, v16"); a(f"v_mov_b32 v{VD}, v17")
    srd_from_ptr(a, 28, 16, SZ_S, WS_S)
    srd_from_ptr(a, 36, 4, 2048*1024)
    srd_from_ptr(a, 40, 6, 2048*1024)
    a(f"v_lshrrev_b32 v{VG}, 3, v0"); a(f"v_and_b32 v4, 7, v0"); a("v_lshlrev_b32 v4, 4, v4")
    a(f"v_lshrrev_b32 v5, 4, v{VG}"); a(f"v_mul_u32_u24 v5, {WRING}, v5"); a(f"v_and_b32 v6, 15, v{VG}"); a("v_mul_u32_u24 v6, 144, v6")
    a(f"v_add3_u32 v{VL}, v5, v6, v4")
    a(f"v_lshl_add_u32 v{VG}, v{VG}, 10, v4")
    a("s_lshl_b32 s58, s51, 16"); a("s_lshl_b32 s3, s52, 7"); a("s_add_u32 s58, s58, s3"); a("s_add_u32 s59, s58, 0x8000")
    a(f"v_and_b32 v{VF}, 15, v1"); a(f"v_lshlrev_b32 v{VF}, 2, v{VF}"); a(f"s_mul_i32 s60, s51, {FSTR}"); a(f"s_add_u32 s60, s60, {FL_S}")
    a("s_lshr_b32 s61, s51, 1"); a(f"s_mul_i32 s61, s61, {FSTR}"); a(f"s_add_u32 s61, s61, {FL_H}")
    a("s_mov_b32 s67, 0")
    a("s_cmp_lg_u32 s50, 0"); a("s_cbranch_scc1 L_g_goh")
    a.label("L_g_pollh")
    a(f"buffer_load_dword v{VP}, v{VF}, s[32:35], s61 offen {PH}")
    a("s_add_u32 s67, s67, 1")
    a("s_waitcnt vmcnt(0)")
    a(f"v_cmp_ne_u32 vcc, 1, v{VP}")
    a("s_and_b32 s3, vcc_lo, 0x7fff")
    a("s_cbranch_scc0 L_g_goh")
    a(f"s_sleep {SLP}")
    a("s_cmp_lt_u32 s67, 0x40000")
    a("s_cbranch_scc1 L_g_pollh")
    a.label("L_g_goh")
    a("s_waitcnt vmcnt(0)")
    a("s_barrier")
    stamp(a, 6, "k1")
    issued = []
    def need(tags):
        idx = [i for i, t in enumerate(issued) if t in tags]
        if not idx: return None
        return len(issued) - 1 - max(idx)
    def h_load(s):
        b = HB + 8*(s % PD)
        a(f"buffer_load_dwordx4 v[{b}:{b+3}], v3, s[76:79], s65 offen"); issued.append(("h0", s))
        a(f"buffer_load_dwordx4 v[{b+4}:{b+7}], v3, s[76:79], s65 offen offset:1024"); issued.append(("h1", s))
        a("s_add_u32 s65, s65, 0x10000")
    a("s_lshl_b32 s68, s52, 7"); a(f"s_add_u32 s68, s68, {1368*1024}")
    def wd_dma(s):
        sl = s % NWS
        a(f"s_add_u32 m0, s62, {sl*2048}")
        if s >= 20: a("s_min_u32 s64, s64, s68")
        a(f"buffer_load_dwordx4 v{VD}, s[24:27], s64 offen lds"); issued.append(("w", s))
        a("s_add_u32 s64, s64, 0x2000")
        a(f"s_add_u32 m0, s62, {sl*2048+1024}")
        if s >= 20: a("s_min_u32 s64, s64, s68")
        a(f"buffer_load_dwordx4 v{VD}, s[24:27], s64 offen lds"); issued.append(("w", s))
        a("s_add_u32 s64, s64, 0x2000")
    def a_rd(s):
        sl = s % NWS; d = AB + 8*(s & 1)
        for ci in range(2):
            a(f"ds_read_b64_tr_b16 v[{d+4*ci}:{d+4*ci+1}], v{VT} offset:{sl*2048+ci*256}")
            a(f"ds_read_b64_tr_b16 v[{d+4*ci+2}:{d+4*ci+3}], v{VT} offset:{sl*2048+ci*256+1024}")
    for s in range(PD): h_load(s)
    a_rd(0)
    a(f"buffer_load_dwordx4 v[{XV}:{XV+3}], v{VG}, s[36:39], s58 offen"); issued.append(("x", 0))
    a(f"buffer_load_dwordx4 v[{XV+4}:{XV+7}], v{VG}, s[36:39], s59 offen"); issued.append(("x", 1))
    for s in range(NS):
        b = HB + 8*(s % PD); d = AB + 8*(s & 1)
        def cs(c): return "0" if s == 0 else f"v[{c}:{c+15}]"
        n = need([("h0", s), ("w", s+1)])
        a(f"s_waitcnt vmcnt({n}) lgkmcnt(0)")
        if s+1 < NS: a_rd(s+1)
        a(f"v_mfma_f32_32x32x16_bf16 v[{ACC}:{ACC+15}], v[{d}:{d+3}], v[{b}:{b+3}], {cs(ACC)}")
        if s + NWS < NS: wd_dma(s+NWS)
        a(f"v_mfma_f32_32x32x16_bf16 v[{ACC+32}:{ACC+47}], v[{d+4}:{d+7}], v[{b}:{b+3}], {cs(ACC+32)}")
        a(f"s_waitcnt vmcnt({need([('h1', s)])})")
        a(f"v_mfma_f32_32x32x16_bf16 v[{ACC+16}:{ACC+31}], v[{d}:{d+3}], v[{b+4}:{b+7}], {cs(ACC+16)}")
        a(f"v_mfma_f32_32x32x16_bf16 v[{ACC+48}:{ACC+63}], v[{d+4}:{d+7}], v[{b+4}:{b+7}], {cs(ACC+48)}")
        if s + PD < NS: h_load(s+PD)
        if RTALL and s in (0, 4, 8, 13, 17): stamp(a, 20+s, "k1")
    stamp(a, 7, "k1")
    a("s_mov_b32 s61, 0")
    if os.environ.get("E1") or os.environ.get("NOF"): a("s_branch L_k2g_go")
    a.label("L_k2g_poll")
    a(f"buffer_load_dword v{VP}, v{VF}, s[32:35], s60 offen {PS}")
    a("s_add_u32 s61, s61, 1")
    a("s_waitcnt vmcnt(0)")
    a(f"v_cmp_ne_u32 vcc, 1, v{VP}")
    a("s_and_b32 s3, vcc_lo, 0xff")
    a("s_cbranch_scc0 L_k2g_go")
    a(f"s_sleep {SLP}")
    a("s_cmp_lt_u32 s61, 0x40000")
    a("s_cbranch_scc1 L_k2g_poll")
    a.label("L_k2g_go")
    a(f"buffer_load_dwordx4 v[{SV}:{SV+3}], v{VG}, s[28:31], s58 offen sc0 sc1")
    a(f"buffer_load_dwordx4 v[{SV+4}:{SV+7}], v{VG}, s[28:31], s59 offen sc0 sc1")
    stamp(a, 8, "k1")
    FB = HB
    a("v_add_u32 v4, s62, v3")
    for q in range(4):
        a(f"s_sub_u32 s56, {q+3}, s50"); a("s_and_b32 s56, s56, 3"); a("s_lshl_b32 s56, s56, 12")
        a("v_add_u32 v5, s56, v4")
        a(f"s_cmp_eq_u32 s50, {q}"); a(f"s_cbranch_scc1 L_k2g_own{q}")
        for i in range(4): a(f"ds_write_b128 v5, v[{ACC+16*q+4*i}:{ACC+16*q+4*i+3}] offset:{1024*i}")
        a(f"s_branch L_k2g_nx{q}")
        a.label(f"L_k2g_own{q}")
        for i in range(16): a(f"v_mov_b32 v{FB+i}, v{ACC+16*q+i}")
        a.label(f"L_k2g_nx{q}")
    a("s_waitcnt lgkmcnt(0)"); a("s_barrier")
    for sl in range(3):
        a(f"s_sub_u32 s56, s50, {sl+1}"); a("s_and_b32 s56, s56, 3"); a(f"s_mul_i32 s56, s56, {WRING}"); a(f"s_add_u32 s56, s56, {sl*4096}")
        a("v_add_u32 v4, s56, v3")
        for i in range(4): a(f"ds_read_b128 v[{ACC+16*sl+4*i}:{ACC+16*sl+4*i+3}], v4 offset:{1024*i}")
    a("v_and_b32 v5, 15, v1"); a("v_mul_u32_u24 v5, 144, v5"); a("v_bfe_u32 v6, v1, 4, 1"); a(f"v_mul_u32_u24 v6, {WRING}, v6"); a("v_add_u32 v5, v5, v6")
    a("v_lshrrev_b32 v6, 5, v1")
    a("s_and_b32 s56, s50, 1"); a(f"s_mul_i32 s56, s56, {2*WRING}")
    a("s_lshr_b32 s57, s50, 1"); a("s_lshl_b32 s57, s57, 6"); a("s_add_u32 s56, s56, s57"); a(f"s_add_u32 s56, s56, 12288")
    a("v_lshl_add_u32 v5, v6, 3, v5"); a("v_add_u32 v5, s56, v5")
    a("s_waitcnt lgkmcnt(0)")
    for i in range(16):
        a(f"v_add_f32 v{FB+i}, v{FB+i}, v{ACC+i}"); a(f"v_add_f32 v{ACC+16+i}, v{ACC+16+i}, v{ACC+32+i}")
    for i in range(16): a(f"v_add_f32 v{FB+i}, v{FB+i}, v{ACC+16+i}")
    NL2E = -math.log2(math.e)
    for i in range(0, 16, 2):
        y = FB + i; t = ACC + 2*i
        a(f"v_cvt_pk_bf16_f32 v{t}, v{y}, v{y+1}")
        a(f"v_lshlrev_b32 v{y}, 16, v{t}"); a(f"v_and_b32 v{y+1}, 0xffff0000, v{t}")
        a(f"v_mul_f32 v{t}, {fhex(NL2E)}, v{y}"); a(f"v_mul_f32 v{t+1}, {fhex(NL2E)}, v{y+1}")
        a(f"v_exp_f32 v{t}, v{t}"); a(f"v_exp_f32 v{t+1}, v{t+1}")
    for i in range(0, 16, 2):
        t = ACC + 2*i
        a(f"v_add_f32 v{t}, 1.0, v{t}"); a(f"v_add_f32 v{t+1}, 1.0, v{t+1}")
        a(f"v_rcp_f32 v{t}, v{t}"); a(f"v_rcp_f32 v{t+1}, v{t+1}")
    for i in range(0, 16, 2):
        y = FB + i; t = ACC + 2*i
        a(f"v_mul_f32 v{y}, v{y}, v{t}"); a(f"v_mul_f32 v{y+1}, v{y+1}, v{t+1}")
        a(f"v_cvt_pk_bf16_f32 v{FB+16+i//2}, v{y}, v{y+1}")
    for q in range(4): a(f"ds_write_b64 v5, v[{FB+16+2*q}:{FB+17+2*q}] offset:{16*q}")
    a("s_waitcnt lgkmcnt(0)"); a("s_barrier")
    a(f"ds_read_b128 v[8:11], v{VL} offset:12288"); a(f"ds_read_b128 v[12:15], v{VL} offset:{12288+2*WRING}")
    a("s_waitcnt vmcnt(0)")
    stamp(a, 9, "k1")
    for i in range(8):
        a(f"v_lshlrev_b32 v{16+2*i}, 16, v{SV+i}"); a(f"v_and_b32 v{17+2*i}, 0xffff0000, v{SV+i}")
        a(f"v_lshlrev_b32 v{32+2*i}, 16, v{XV+i}"); a(f"v_and_b32 v{33+2*i}, 0xffff0000, v{XV+i}")
    a("s_waitcnt lgkmcnt(0)")
    for i in range(8):
        a(f"v_lshlrev_b32 v{48+2*i}, 16, v{8+i}"); a(f"v_and_b32 v{49+2*i}, 0xffff0000, v{8+i}")
    for i in range(8): a(f"v_pk_mul_f32 {P(16+2*i)}, {P(16+2*i)}, {P(48+2*i)}")
    for i in range(8): a(f"v_cvt_pk_bf16_f32 v{8+i}, v{16+2*i}, v{17+2*i}")
    for i in range(8):
        a(f"v_lshlrev_b32 v{16+2*i}, 16, v{8+i}"); a(f"v_and_b32 v{17+2*i}, 0xffff0000, v{8+i}")
    for i in range(8): a(f"v_pk_add_f32 {P(16+2*i)}, {P(16+2*i)}, {P(32+2*i)}")
    for i in range(8): a(f"v_cvt_pk_bf16_f32 v{8+i}, v{16+2*i}, v{17+2*i}")
    a(f"buffer_store_dwordx4 v[8:11], v{VG}, s[40:43], s58 offen")
    a(f"buffer_store_dwordx4 v[12:15], v{VG}, s[40:43], s59 offen")
    stamp_flush(a, 10, "k1", 5)
    a("s_endpgm")


RQ = 5152
R2 = 1.0/math.sqrt(2.0)
def f_cont(a):
    A = [8+2*i for i in range(8)]; B = [24+2*i for i in range(8)]
    TW1 = [40+2*i for i in range(8)]; TW2 = [56+2*i for i in range(8)]
    Y = 72
    PFS = int(os.environ.get("PFS", "0"))
    if PFS: a("s_load_dwordx2 s[40:41], s[0:1], 48")
    srd_from_ptr(a, 32, 12, SZ_FLAG, WS_FLAG)
    a("v_and_b32 v1, 63, v0")
    a("v_lshrrev_b32 v2, 6, v0")
    a("v_readfirstlane_b32 s50, v2")
    a("s_lshr_b32 s56, s14, 2"); a(f"s_mul_i32 s56, s56, {YSTR}"); a("s_and_b32 s3, s14, 3"); a("s_lshl_b32 s3, s3, 2"); a("s_add_u32 s56, s56, s3"); a(f"s_add_u32 s56, s56, {FL_Y}")
    a("v_mov_b32 v140, 1"); a("v_mov_b32 v141, 0")
    rowgroup_map(a, 14, 2)
    a("v_lshrrev_b32 v5, 3, v1"); a("v_and_b32 v6, 7, v1")
    a("v_lshlrev_b32 v3, 4, v1"); a("v_lshlrev_b32 v4, 4, v6")
    a("s_lshl_b32 s51, s14, 3"); a("s_lshl_b32 s52, s50, 1"); a("s_add_u32 s51, s51, s52")
    a("v_lshrrev_b32 v120, 2, v0"); a("v_and_b32 v121, 3, v0")
    a(f"v_mul_u32_u24 v122, {CSTR}, v120"); a("v_lshlrev_b32 v123, 4, v121"); a("v_add_u32 v122, v122, v123")
    a("s_lshl_b32 s53, s14, 6")
    a(f"v_mul_u32_u24 v142, {YSTR}, v1")
    a("s_and_b32 s57, s2, 7"); a(f"s_mul_i32 s57, s57, {FSTR}"); a(f"s_add_u32 s57, s57, {FL_P}")
    a("s_waitcnt vmcnt(0)")
    a("s_barrier")
    a("s_cmp_lg_u32 s50, 0"); a("s_cbranch_scc1 L_f_nof")
    a("s_mov_b64 exec, 1")
    if not os.environ.get("E3"): a("buffer_store_dword v140, v141, s[32:35], s56 offen")
    a("s_mov_b64 exec, -1")
    a.label("L_f_nof")
    stamp(a, 8, "k2")
    if os.environ.get("E1"): a("s_endpgm")
    if PFS:
        a("s_waitcnt lgkmcnt(0)")
        srd_from_ptr(a, 40, 40, 1376*1024)
        a(f"v_mul_u32_u24 v150, {PFS}, v0")
        a("s_lshr_b32 s3, s2, 3"); a("s_mul_i32 s3, s3, 44032")
        for i in range(-(-44032//(PFS*256))):
            a(f"buffer_load_dword v{151+i}, v150, s[40:43], s3 offen")
            a(f"s_add_u32 s3, s3, {PFS*256}")
    load_tw(a, TW2[0], 4, 20, T_R2, 8)
    load_tw(a, TW1[0], 3, 20, T_R1, 64)
    srd_from_ptr(a, 24, 12, SZ_S, WS_S)
    a("s_lshl_b32 s55, s51, 10")
    a("v_lshrrev_b32 v123, 3, v120"); a("v_add_u32 v123, v123, v120"); a("v_lshlrev_b32 v123, 4, v123")
    a(f"v_mul_u32_u24 v124, {RQ}, v121"); a("v_add_u32 v123, v123, v124")
    a(f"s_mul_i32 s61, s50, {RQ}")
    a("v_mul_u32_u24 v124, 9, v6"); a("v_add_u32 v125, v124, v5"); a("v_lshlrev_b32 v125, 4, v125"); a("v_add_u32 v125, s61, v125")
    a("v_lshlrev_b32 v7, 3, v6"); a("v_add_u32 v7, v7, v5")
    a("v_sub_u32 v126, 64, v7"); a("v_lshrrev_b32 v127, 3, v126"); a("v_add_u32 v126, v126, v127"); a("v_lshlrev_b32 v126, 4, v126"); a("v_add_u32 v126, s61, v126")
    a("v_sub_u32 v127, 256, v7"); a("v_and_b32 v127, 255, v127"); a("v_lshrrev_b32 v128, 3, v127"); a("v_add_u32 v127, v127, v128"); a("v_lshlrev_b32 v127, 4, v127"); a("v_add_u32 v127, s61, v127")
    a("v_lshlrev_b32 v129, 3, v1"); a("v_add_u32 v129, s61, v129")
    a("v_mul_u32_u24 v130, 72, v5"); a("v_add_u32 v131, v130, v6"); a("v_lshlrev_b32 v131, 3, v131"); a("v_add_u32 v131, s61, v131")
    a("v_add_u32 v132, v124, v130"); a("v_lshlrev_b32 v132, 3, v132"); a("v_add_u32 v132, s61, v132")
    a("v_lshlrev_b32 v133, 4, v5"); a("v_add_u32 v133, v133, v129")
    a("v_mul_u32_u24 v134, 80, v1"); a("v_add_u32 v134, s61, v134")
    a("s_mov_b32 s62, 0")
    a("s_cmp_lg_u32 s50, 0"); a("s_cbranch_scc1 L_f_go")
    a("s_lshr_b32 s3, s2, 3"); a(f"s_cmp_lg_u32 s3, {LEAD}"); a("s_cbranch_scc1 L_f_poll")
    a(f"s_mov_b32 s63, {FL_Y}")
    a.label("L_f_lead")
    a("buffer_load_dwordx4 v[144:147], v142, s[32:35], s63 offen sc0 sc1")
    a("s_add_u32 s62, s62, 1")
    a("s_waitcnt vmcnt(0)")
    a("v_and_b32 v144, v144, v145"); a("v_and_b32 v146, v146, v147"); a("v_and_b32 v144, v144, v146")
    a("v_cmp_ne_u32 vcc, 1, v144")
    a("s_cmp_eq_u64 vcc, 0")
    a("s_cbranch_scc1 L_f_pub")
    a(f"s_sleep {SLP}")
    a("s_cmp_lt_u32 s62, 0x40000")
    a("s_cbranch_scc1 L_f_lead")
    a("s_branch L_f_go")
    a.label("L_f_pub")
    a("s_mov_b64 exec, 1")
    a("buffer_store_dword v140, v141, s[32:35], s57 offen")
    a("s_mov_b64 exec, -1")
    a("s_branch L_f_go")
    a.label("L_f_poll")
    for k in range(4):
        a(f"buffer_load_dword v143, v141, s[32:35], s57 offen {PY if k < 3 else 'sc0 sc1'}")
        a("s_waitcnt vmcnt(0)")
        a("v_cmp_ne_u32 vcc, 1, v143")
        a("s_cmp_eq_u64 vcc, 0")
        a("s_cbranch_scc1 L_f_go")
        a(f"s_sleep {int(os.environ.get('SLPY', '8'))}")
    a("s_add_u32 s62, s62, 1")
    a("s_cmp_lt_u32 s62, 0x10000")
    a("s_cbranch_scc1 L_f_poll")
    a.label("L_f_go")
    a("s_barrier")
    stamp(a, 9, "k2")
    for i in range(4):
        a(f"buffer_load_dwordx4 v[{Y+4*i}:{Y+4*i+3}], v122, s[28:31], s53 offen" + os.environ.get("Y2SC", ""))
        if i < 3: a(f"s_add_u32 s53, s53, {64*CSTR}")
    a("s_waitcnt vmcnt(0)")
    for i in range(4): a(f"ds_write_b128 v123, v[{Y+4*i}:{Y+4*i+3}] offset:{72*16*i}")
    a("s_waitcnt lgkmcnt(0)"); a("s_barrier")
    for k2 in range(4): a(f"ds_read_b128 v[{Y+4*k2}:{Y+4*k2+3}], v125 offset:{72*16*k2}")
    a(f"ds_read_b128 v[{Y+16}:{Y+19}], v127")
    for k2 in range(5, 8): a(f"ds_read_b128 v[{Y+4*k2}:{Y+4*k2+3}], v126 offset:{72*16*(7-k2)}")
    a("s_waitcnt lgkmcnt(0)")
    for k2 in range(4):
        y = Y + 4*k2
        cadd_pi(a, A[k2], y, y+2)
    for k2 in range(4, 8):
        y = Y + 4*k2
        if NPK[0]:
            a(f"v_add_f32 v{A[k2]}, v{y}, v{y+3}"); a(f"v_sub_f32 v{A[k2]+1}, v{y+2}, v{y+1}")
        else: a(f"v_pk_add_f32 {P(A[k2])}, {P(y)}, {P(y+2)} op_sel:[0,1] op_sel_hi:[1,0] neg_hi:[1,0]")
    a("v_cmp_eq_u32 vcc, 0, v1")
    a(f"v_cndmask_b32 v{A[0]}, v{A[0]}, v{Y}, vcc"); a(f"v_cndmask_b32 v{A[0]+1}, v{A[0]+1}, v{Y+2}, vcc")
    a(f"v_cndmask_b32 v{A[4]}, v{A[4]}, v{Y+17}, vcc"); a(f"v_cndmask_b32 v{A[4]+1}, v{A[4]+1}, v{Y+19}, vcc")
    bfly8(a, A, B, 48, inv=True)
    for n0 in range(8): a(f"ds_write_b64 v132, {P(B[n0])} offset:{8*n0}")
    a(f"ds_read_b64 {P(A[0])}, v131")
    for k in range(1, 8): a(f"ds_read_b64 {P(B[k])}, v131 offset:{72*k}")
    a("s_waitcnt lgkmcnt(0)")
    for k in range(1, 8): cmul(a, A[k], B[k], TW2[k], conj=True)
    bfly8(a, A, B, 48, inv=True)
    for n1 in range(8): a(f"ds_write_b64 v131, {P(B[n1])} offset:{64*n1}")
    a(f"ds_read_b64 {P(A[0])}, v129")
    for k in range(1, 8): a(f"ds_read_b64 {P(B[k])}, v129 offset:{576*k}")
    a("s_waitcnt lgkmcnt(0)")
    for k in range(1, 8): cmul(a, A[k], B[k], TW1[k], conj=True)
    bfly8(a, A, B, 48, inv=True)
    for j in range(8): a(f"ds_write_b64 v133, {P(B[j])} offset:{640*j}")
    for q in range(4): a(f"ds_read_b128 v[{A[2*q]}:{A[2*q]+3}], v134 offset:{16*q}")
    sc = 1.0/(2*2048*512)
    a(f"s_mov_b32 s46, {fhex(sc)}"); a(f"s_mov_b32 s47, {fhex(sc)}")
    a("s_and_b32 s56, s14, 7"); a("s_lshl_b32 s56, s56, 2")
    a("s_lshr_b32 s3, s14, 3"); a(f"s_mul_i32 s3, s3, {FSTR}"); a("s_add_u32 s56, s56, s3"); a(f"s_add_u32 s56, s56, {FL_S}")
    a("s_waitcnt lgkmcnt(0)")
    for e in range(8): cscale(a, A[e], A[e], 46)
    OUT = 120
    for row in range(2):
        for q in range(4):
            e0, e1 = A[2*q]+row, A[2*q+1]+row
            a(f"v_cvt_pk_bf16_f32 v{OUT+4*row+q}, v{e0}, v{e1}")
    a(f"buffer_store_dwordx4 v[{OUT}:{OUT+3}], v3, s[24:27], s55 offen")
    a(f"buffer_store_dwordx4 v[{OUT+4}:{OUT+7}], v3, s[24:27], s55 offen offset:1024")
    a("s_waitcnt vmcnt(0)")
    a("s_barrier")
    a("s_cmp_lg_u32 s50, 0"); a("s_cbranch_scc1 L_f_nos")
    a("s_mov_b64 exec, 1")
    a("buffer_store_dword v140, v141, s[32:35], s56 offen")
    a("s_mov_b64 exec, -1")
    a.label("L_f_nos")
    stamp_flush(a, 10, "k2", 5)
    a("s_endpgm")
```

```python
from gen_common import *
R2 = 1.0/math.sqrt(2.0)

WS_S = WS_G; SZ_S = SZ_G
WS_XN = 0x1700000; SZ_XN = 2048*1024
WS_FLAG = 0x1900000; SZ_FLAG = 0x100000
FSTR = 4352; FL_Y = 0; FL_H = 0x40000 + 1024; FL_S = 0x80000 + 2048; FL_P = 0xC0000 + 3072

FREG = 4928
L0_FFT = 0
L0_WJ = 4*FREG
L0_XN = L0_WJ + 64*144
L0_WD = L0_XN + 8*1040
WDT = os.environ.get('WDT', '0') == '1'
K0_LDS = L0_WD + (8192 if WDT else 0)
K0V2 = os.environ.get('K0V2', '0') == '1'
K0_VGPR = 104 if K0V2 else 96

def rowgroup_map(a, dst, src):
    a(f"s_and_b32 s{dst}, s{src}, 3"); a(f"s_lshl_b32 s{dst}, s{dst}, 6")
    a(f"s_and_b32 s3, s{src}, 4"); a("s_lshl_b32 s3, s3, 3"); a(f"s_or_b32 s{dst}, s{dst}, s3")
    a(f"s_lshr_b32 s3, s{src}, 3"); a("s_and_b32 s3, s3, 31"); a(f"s_or_b32 s{dst}, s{dst}, s3")

def wave_sum4(a, regs, sdst):
    for sh in (1, 2, 4, 8):
        for r in regs: a(f"v_add_f32_dpp v{r}, v{r}, v{r} row_shr:{sh} row_mask:0xf bank_mask:0xf bound_ctrl:0")
    for r in regs: a(f"v_add_f32_dpp v{r}, v{r}, v{r} row_bcast:15 row_mask:0xa bank_mask:0xf")
    for r in regs: a(f"v_add_f32_dpp v{r}, v{r}, v{r} row_bcast:31 row_mask:0xc bank_mask:0xf")
    for i, r in enumerate(regs): a(f"v_readlane_b32 s{sdst+i}, v{r}, 63")

def ln_two_rows_xn(a, A, T, sT, vxn):
    t0, t1, M, Rv, t2, t3 = T, T+2, T+4, T+6, T+8, T+10
    cadd(a, t0, A[0], A[1]); a(f"v_pk_mul_f32 {P(t1)}, {P(A[0])}, {P(A[0])}")
    cadd(a, t2, A[2], A[3]); a(f"v_pk_mul_f32 {P(t3)}, {P(A[1])}, {P(A[1])}")
    cadd(a, t0, t0, A[4]); a(f"v_pk_fma_f32 {P(t1)}, {P(A[2])}, {P(A[2])}, {P(t1)}")
    cadd(a, t2, t2, A[5]); a(f"v_pk_fma_f32 {P(t3)}, {P(A[3])}, {P(A[3])}, {P(t3)}")
    cadd(a, t0, t0, A[6]); a(f"v_pk_fma_f32 {P(t1)}, {P(A[4])}, {P(A[4])}, {P(t1)}")
    cadd(a, t2, t2, A[7]); a(f"v_pk_fma_f32 {P(t3)}, {P(A[5])}, {P(A[5])}, {P(t3)}")
    a(f"v_pk_fma_f32 {P(t1)}, {P(A[6])}, {P(A[6])}, {P(t1)}")
    a(f"v_pk_fma_f32 {P(t3)}, {P(A[7])}, {P(A[7])}, {P(t3)}")
    cadd(a, t0, t0, t2); cadd(a, t1, t1, t3)
    wave_sum4(a, [t0, t0+1, t1, t1+1], sT)
    a(f"v_mov_b32 v{M}, s{sT}"); a(f"v_mov_b32 v{M+1}, s{sT+1}")
    a(f"v_mov_b32 v{Rv}, s{sT+2}"); a(f"v_mov_b32 v{Rv+1}, s{sT+3}")
    a(f"v_mul_f32 v{M}, {fhex(1/512)}, v{M}"); a(f"v_mul_f32 v{M+1}, {fhex(1/512)}, v{M+1}")
    a(f"v_mul_f32 v{Rv}, {fhex(1/512)}, v{Rv}"); a(f"v_mul_f32 v{Rv+1}, {fhex(1/512)}, v{Rv+1}")
    a(f"v_fma_f32 v{Rv}, -v{M}, v{M}, v{Rv}"); a(f"v_fma_f32 v{Rv+1}, -v{M+1}, v{M+1}, v{Rv+1}")
    a(f"v_max_f32 v{Rv}, 0, v{Rv}"); a(f"v_max_f32 v{Rv+1}, 0, v{Rv+1}")
    def rnd(p, t):
        a(f"v_cvt_pk_bf16_f32 v{t}, v{p}, v{p+1}")
        a(f"v_lshlrev_b32 v{p}, 16, v{t}")
        a(f"v_and_b32 v{p+1}, 0xffff0000, v{t}")
    rnd(M, t0)
    rnd(Rv, t1)
    a(f"v_add_f32 v{Rv}, {fhex(1e-5)}, v{Rv}"); a(f"v_add_f32 v{Rv+1}, {fhex(1e-5)}, v{Rv+1}")
    for j in range(0, 4): csub(a, A[j], A[j], M)
    rnd(Rv, t1)
    a(f"v_sqrt_f32 v{Rv}, v{Rv}"); a(f"v_sqrt_f32 v{Rv+1}, v{Rv+1}")
    for j in range(4, 8): csub(a, A[j], A[j], M)
    rnd(Rv, t1)
    a(f"v_rcp_f32 v{Rv}, v{Rv}"); a(f"v_rcp_f32 v{Rv+1}, v{Rv+1}")
    tt = [t0, t0+1, t2, t2+1, t3, t3+1, M, M+1]
    for j in range(8): a(f"v_cvt_pk_bf16_f32 v{tt[j]}, v{A[j]}, v{A[j]+1}")
    for j in range(8):
        a(f"v_lshlrev_b32 v{A[j]}, 16, v{tt[j]}"); a(f"v_and_b32 v{A[j]+1}, 0xffff0000, v{tt[j]}")
    for j in range(8): a(f"v_pk_mul_f32 {P(A[j])}, {P(A[j])}, {P(Rv)}")
    for j in range(8): a(f"v_cvt_pk_bf16_f32 v{tt[j]}, v{A[j]}, v{A[j]+1}")
    for j in range(8):
        a(f"v_lshlrev_b32 v{A[j]}, 16, v{tt[j]}"); a(f"v_and_b32 v{A[j]+1}, 0xffff0000, v{tt[j]}")
        a(f"ds_write_b16 v{vxn}, v{tt[j]} offset:{128*j}")
        a(f"ds_write_b16_d16_hi v{vxn}, v{tt[j]} offset:{128*j+1040}")

def k0_fft(a):
    A = [8+2*i for i in range(8)]; B = [24+2*i for i in range(8)]
    TW1 = [40+2*i for i in range(8)]; TW2 = [56+2*i for i in range(8)]
    T = 72
    a("s_lshl_b32 s62, s49, 3"); a("s_lshl_b32 s3, s50, 1"); a("s_add_u32 s62, s62, s3")
    a("s_lshl_b32 s62, s62, 10")
    a("v_lshlrev_b32 v5, 1, v1")
    a("v_and_b32 v4, 7, v1"); a("v_lshlrev_b32 v4, 4, v4")
    a("s_waitcnt lgkmcnt(0)")
    srd_from_ptr(a, 20, 4, 2048*1024)
    for j in range(8):
        a(f"buffer_load_ushort v{A[j]}, v5, s[20:23], s62 offen offset:{128*j}")
        a(f"buffer_load_ushort v{A[j]+1}, v5, s[20:23], s62 offen offset:{128*j+1024}")
    load_tw(a, 40, 3, 24, T_R1, 64)
    load_tw(a, 56, 4, 24, T_R2, 8)
    srd_from_ptr(a, 28, 16, SZ_Y1T, WS_Y1T)
    a(f"s_mul_i32 s61, s50, {FREG}"); a(f"s_add_u32 s61, s61, {L0_FFT}")
    a(f"s_mul_i32 s3, s50, 2080"); a(f"s_add_u32 s3, s3, {L0_XN}"); a("v_add_u32 v89, s3, v5")
    a("v_lshlrev_b32 v84, 3, v1"); a("v_add_u32 v84, s61, v84")
    a("v_lshrrev_b32 v5, 3, v1"); a("v_and_b32 v6, 7, v1")
    a("v_mul_u32_u24 v85, 72, v5"); a("v_add_u32 v86, v85, v6"); a("v_lshlrev_b32 v86, 3, v86"); a("v_add_u32 v86, s61, v86")
    a("v_mul_u32_u24 v87, 9, v6"); a("v_add_u32 v87, v87, v85"); a("v_lshlrev_b32 v87, 3, v87"); a("v_add_u32 v87, s61, v87")
    a("v_lshlrev_b32 v88, 3, v6"); a("v_add_u32 v88, v88, v5"); a("v_lshlrev_b32 v88, 3, v88"); a("v_add_u32 v88, s61, v88")
    if K0V2:
        srd_from_ptr(a, 32, 16, SZ_XN, WS_XN)
        a("v_lshrrev_b32 v90, 3, v0")
        a("v_mul_u32_u24 v91, 1040, v6"); a("v_lshl_add_u32 v91, v90, 4, v91"); a(f"v_add_u32 v91, {L0_XN}, v91")
        a("v_lshrrev_b32 v92, 1, v90"); a("v_lshlrev_b32 v92, 10, v92"); a("v_and_b32 v90, 1, v90"); a("v_lshl_add_u32 v92, v90, 9, v92")
        a("v_lshl_add_u32 v92, v6, 4, v92")
        a("s_lshr_b32 s70, s49, 2"); a("s_lshl_b32 s70, s70, 15"); a("s_and_b32 s3, s49, 3"); a("s_lshl_b32 s3, s3, 7"); a("s_add_u32 s70, s70, s3")
        a("s_add_u32 s71, s70, 0x4000")
    a("s_waitcnt vmcnt(8)")
    stamp(a, 1, "k0")
    for j in range(8):
        a(f"v_lshlrev_b32 v{A[j]}, 16, v{A[j]}"); a(f"v_lshlrev_b32 v{A[j]+1}, 16, v{A[j]+1}")
    ln_two_rows_xn(a, A, T, 66, 89)
    stamp(a, 2, "k0")
    XNL = os.environ.get("XNL", "0") == "1"
    if K0V2 and not XNL:
        a("s_waitcnt lgkmcnt(0)"); a("s_barrier")
        a("ds_read_b128 v[96:99], v91"); a("ds_read_b128 v[100:103], v91 offset:512")
    bfly8(a, A, B, 64)
    if K0V2 and XNL: a("s_waitcnt vmcnt(0)")
    elif K0V2:
        a("s_waitcnt vmcnt(0) lgkmcnt(0)")
        a("buffer_store_dwordx4 v[96:99], v92, s[32:35], s70 offen")
        a("buffer_store_dwordx4 v[100:103], v92, s[32:35], s71 offen")
    else: a("s_waitcnt vmcnt(4)")
    for k in range(1, 8): cmul(a, A[k], B[k], TW1[k])
    a(f"ds_write_b64 v84, {P(B[0])}")
    for k in range(1, 8): a(f"ds_write_b64 v84, {P(A[k])} offset:{576*k}")
    for n1 in range(8): a(f"ds_read_b64 {P(A[n1])}, v86 offset:{64*n1}")
    a("s_waitcnt lgkmcnt(0)" if K0V2 else "s_waitcnt vmcnt(0) lgkmcnt(0)")
    bfly8(a, A, B, 64)
    for k in range(1, 8): cmul(a, A[k], B[k], TW2[k])
    a(f"ds_write_b64 v86, {P(B[0])}")
    for k in range(1, 8): a(f"ds_write_b64 v86, {P(A[k])} offset:{72*k}")
    for n0 in range(8): a(f"ds_read_b64 {P(A[n0])}, v87 offset:{8*n0}")
    a("s_waitcnt lgkmcnt(0)")
    bfly8(a, A, B, 64)
    for k2 in range(8): a(f"ds_write_b64 v88, {P(B[k2])} offset:{512*k2}")
    a(f"ds_write_b64 v88, {P(B[4])} offset:4096")
    Z = [8+2*i for i in range(4)]; ZM = [16+2*i for i in range(4)]
    a("v_lshrrev_b32 v5, 2, v0"); a("v_and_b32 v6, 3, v0")
    a(f"v_mul_u32_u24 v7, {FREG}, v6"); a(f"v_add_u32 v7, {L0_FFT}, v7")
    a("v_lshlrev_b32 v84, 3, v5"); a("v_add_u32 v84, v84, v7")
    a("v_sub_u32 v85, 320, v5"); a("v_lshlrev_b32 v85, 3, v85"); a("v_add_u32 v85, v85, v7")
    stamp(a, 3, "k0")
    a("s_waitcnt lgkmcnt(0)")
    a("s_barrier")
    stamp(a, 4, "k0")
    if K0V2 and XNL:
        a("ds_read_b128 v[96:99], v91"); a("ds_read_b128 v[100:103], v91 offset:512")
    for j in range(4):
        a(f"ds_read_b64 {P(Z[j])}, v84 offset:{512*j}")
        a(f"ds_read_b64 {P(ZM[j])}, v85 offset:{512*(3-j)}")
    a("v_cmp_eq_u32 vcc, 0, v5")
    a("v_lshlrev_b32 v5, 4, v0"); a(f"s_mul_i32 s3, s49, {RS}")
    if K0V2 and XNL:
        a("s_waitcnt lgkmcnt(8)")
        a("buffer_store_dwordx4 v[96:99], v92, s[32:35], s70 offen")
        a("buffer_store_dwordx4 v[100:103], v92, s[32:35], s71 offen")
    a("s_waitcnt lgkmcnt(0)")
    O = [24+4*j for j in range(4)]
    for j in range(4):
        a(f"v_pk_add_f32 {P(O[j])}, {P(Z[j])}, {P(ZM[j])} neg_hi:[0,1]")
        a(f"v_pk_add_f32 {P(O[j]+2)}, {P(Z[j])}, {P(ZM[j])} op_sel:[1,1] op_sel_hi:[0,0] neg_hi:[1,0]")
    a(f"v_add_f32 v{T}, v{Z[0]}, v{Z[0]}"); a(f"v_add_f32 v{T+1}, v{ZM[0]}, v{ZM[0]}")
    a(f"v_add_f32 v{T+2}, v{Z[0]+1}, v{Z[0]+1}"); a(f"v_add_f32 v{T+3}, v{ZM[0]+1}, v{ZM[0]+1}")
    for q in range(4): a(f"v_cndmask_b32 v{O[0]+q}, v{O[0]+q}, v{T+q}, vcc")
    for j in (1, 2, 3, 0):
        a(f"s_add_u32 s62, s3, {4096*j}")
        a(f"buffer_store_dwordx4 v[{O[j]}:{O[j]+3}], v5, s[28:31], s62 offen")
    stamp(a, 5, "k0")
    stamp_flush(a, 6, "k0", 5)
    a("s_endpgm")

WV = 8; XC = 24; DV = 30; WP = 46; DP = 54; PF = 62
def k0_aux(a):
    a("v_lshlrev_b32 v6, 1, v1")
    a("s_and_b32 s62, s2, 0xfc"); a("s_add_u32 s62, s62, s51")
    a("s_lshr_b32 s63, s62, 5")
    a("s_lshr_b32 s3, s62, 2"); a("s_and_b32 s3, s3, 7"); a("s_lshl_b32 s3, s3, 3"); a("s_add_u32 s63, s63, s3")
    a("s_and_b32 s3, s62, 3"); a("s_lshl_b32 s3, s3, 7"); a("s_add_u32 s63, s63, s3")
    a("s_mul_i32 s63, s63, 514")
    a("s_and_b32 s66, s2, 3"); a("s_lshl_b32 s66, s66, 7"); a("s_add_u32 s66, s66, s63")
    a(f"v_and_b32 v{XC}, 7, v1"); a(f"v_lshrrev_b32 v{XC+1}, 2, v{XC}"); a(f"v_and_b32 v{XC+2}, 3, v{XC}")
    a(f"v_mul_u32_u24 v{XC+1}, 32896, v{XC+1}"); a(f"v_mul_u32_u24 v{XC+2}, 263168, v{XC+2}"); a(f"v_add_u32 v{XC+1}, v{XC+1}, v{XC+2}")
    a("s_lshl_b32 s67, s2, 2"); a("s_add_u32 s67, s67, s51")
    a("v_and_b32 v7, 31, v1"); a("v_lshlrev_b32 v7, 1, v7")
    a("v_lshrrev_b32 v2, 5, v1"); a("v_lshlrev_b32 v2, 12, v2"); a("v_add_u32 v7, v7, v2")
    a("v_add_u32 v2, 0x2000, v7")
    a("v_and_b32 v4, 31, v1"); a("v_min_u32 v4, 23, v4"); a("v_lshlrev_b32 v4, 6, v4")
    a("v_lshrrev_b32 v5, 5, v1"); a("v_mul_u32_u24 v5, 2752, v5"); a("v_add_u32 v4, v4, v5")
    a("s_lshr_b32 s70, s2, 3"); a("s_and_b32 s70, s70, 31"); a("s_lshl_b32 s70, s70, 2"); a("s_add_u32 s70, s70, s51")
    a(f"s_mul_i32 s70, s70, {4*2752}")
    a("s_and_b32 s3, s2, 4")
    if os.environ.get("PFX") == "1": a("s_xor_b32 s3, s3, 4")
    a("s_mul_i32 s3, s3, 384"); a("s_add_u32 s70, s70, s3")
    a(f"s_add_u32 s71, s70, {2*2752}")
    a("s_waitcnt lgkmcnt(0)")
    srd_from_ptr(a, 32, 6, 2048*514)
    srd_from_ptr(a, 36, 8, 2048*514)
    for r in range(8):
        koff = (64*(r >> 2) + 512*(r & 3))*514
        a(f"s_add_u32 s3, s66, {koff}")
        a(f"buffer_load_ushort v{WV+2*r}, v6, s[32:35], s3 offen")
        a(f"buffer_load_ushort v{WV+2*r+1}, v6, s[36:39], s3 offen")
    a(f"buffer_load_ushort v{XC+3}, v{XC+1}, s[32:35], s63 offen offset:512")
    a(f"buffer_load_ushort v{XC+4}, v{XC+1}, s[36:39], s63 offen offset:512")
    srd_from_ptr(a, 44, 14, 1376*1024)
    if WDT:
        a("v_lshrrev_b32 v80, 5, v1"); a("v_bfe_u32 v81, v1, 4, 1"); a("v_bfe_u32 v82, v1, 2, 2"); a("v_and_b32 v83, 3, v1")
        a("v_lshlrev_b32 v84, 12, v80"); a("v_lshl_add_u32 v84, v82, 10, v84"); a("v_lshl_add_u32 v84, v81, 6, v84"); a("v_lshl_add_u32 v84, v83, 4, v84")
        a("v_lshlrev_b32 v85, 9, v80"); a("v_lshl_add_u32 v85, v82, 6, v85"); a("v_lshl_add_u32 v85, v81, 5, v85"); a("v_lshl_add_u32 v85, v83, 3, v85")
        a("s_lshl_b32 s68, s51, 11"); a(f"s_add_u32 s68, s68, {L0_WD}"); a("v_add_u32 v85, s68, v85")
        a("s_lshr_b32 s69, s67, 3"); a("s_lshl_b32 s69, s69, 14"); a("s_and_b32 s3, s67, 7"); a("s_lshl_b32 s3, s3, 7"); a("s_add_u32 s69, s69, s3")
        a("s_mov_b32 m0, s68")
        a("buffer_load_dwordx4 v84, s[44:47], s69 offen lds")
        a("s_add_u32 m0, s68, 1024"); a("s_add_u32 s69, s69, 0x2000")
        a("buffer_load_dwordx4 v84, s[44:47], s69 offen lds")
    def wd_loads(sf, dv):
        a(f"s_lshr_b32 s69, s{sf}, 4"); a("s_lshl_b32 s69, s69, 14")
        a(f"s_and_b32 s3, s{sf}, 15"); a("s_lshl_b32 s3, s3, 6"); a("s_add_u32 s69, s69, s3")
        for e in range(8):
            a(f"buffer_load_ushort v{dv+e}, v{7 if e < 4 else 2}, s[44:47], s69 offen offset:{1024*(e&3)}")
    NOWD = os.environ.get("NOWD", "0") == "1"
    if not NOWD:
        wd_loads(67, DV)
        a("s_add_u32 s68, s67, 1024")
        wd_loads(68, DV+8)
    npf = 2 if WDT else 0
    if os.environ.get("PFW", "1") == "2":
        a("s_cmp_lt_u32 s67, 512"); a("s_cselect_b32 s72, s10, s12"); a("s_cselect_b32 s73, s11, s13")
        a("s_and_b32 s73, s73, 0xffff"); a(f"s_mov_b32 s74, {512*2752}"); a("s_mov_b32 s75, 0x00020000")
        a("v_min_u32 v4, 42, v1"); a("v_lshlrev_b32 v4, 6, v4")
        a("s_and_b32 s70, s67, 511"); a("s_mul_i32 s70, s70, 2752")
        a(f"buffer_load_dword v{PF}, v4, s[72:75], s70 offen")
        npf += 1
    if os.environ.get("PFW", "1") == "1":
        srd_from_ptr(a, 72, 10, 512*2752)
        srd_from_ptr(a, 76, 12, 512*2752)
        a(f"buffer_load_dword v{PF}, v4, s[72:75], s70 offen")
        a(f"buffer_load_dword v{PF+1}, v4, s[76:79], s70 offen")
        a(f"buffer_load_dword v{PF+2}, v4, s[72:75], s71 offen")
        a(f"buffer_load_dword v{PF+3}, v4, s[76:79], s71 offen")
        npf += 4
    if os.environ.get("PFC", "1") == "1":
        a("s_getpc_b64 s[72:73]")
        a.raw("L_k0_pc2:")
        a("s_add_u32 s72, s72, k1_kernel-L_k0_pc2")
        a("s_addc_u32 s73, s73, 0")
        a("s_and_b32 s73, s73, 0xffff")
        a(f"s_mov_b32 s74, TWTAB+{TAB_SIZE}-k1_kernel")
        a("s_mov_b32 s75, 0x00020000")
        a("v_and_b32 v5, 15, v1"); a("v_lshlrev_b32 v5, 6, v5")
        a("s_lshr_b32 s70, s2, 3"); a("s_and_b32 s70, s70, 31"); a("s_lshl_b32 s70, s70, 2"); a("s_add_u32 s70, s70, s51"); a("s_lshl_b32 s70, s70, 10")
        a(f"buffer_load_dword v{PF+4}, v5, s[72:75], s70 offen")
        npf += 1
    if NOWD and os.environ.get("PFD", "1") == "1" and not WDT:
        a("v_min_u32 v5, 10, v1"); a("v_lshlrev_b32 v5, 7, v5"); a(f"s_mul_i32 s70, s67, {11*128}")
        a(f"buffer_load_dword v{PF+5}, v5, s[44:47], s70 offen")
        npf += 1
    srd_from_ptr(a, 40, 16, SZ_WT, WS_WT)
    srd_from_ptr(a, 24, 16, SZ_WD, WS_WD)
    srd_from_ptr(a, 28, 16, SZ_XN, WS_XN)
    a("s_lshl_b32 s3, s51, 8"); a("s_add_u32 s3, s3, s2"); a("s_cmp_lt_u32 s3, 32"); a("s_cbranch_scc0 L_k0_nf")
    srd_from_ptr(a, 20, 16, SZ_FLAG, WS_FLAG)
    for q in range(4): a(f"v_mov_b32 v{PF+6+q}, 0")
    a(f"s_mul_i32 s3, s2, {FSTR}")
    a("s_mov_b64 exec, 255")
    for fl in (FL_H, FL_S, FL_P):
        a(f"s_add_u32 s70, s3, {fl}")
        a(f"buffer_store_dwordx4 v[{PF+6}:{PF+9}], v3, s[20:23], s70 offen")
    a("s_mov_b64 exec, -1")
    a(f"s_lshl_b32 s70, s2, 10"); a(f"s_add_u32 s70, s70, {FL_Y}")
    a(f"buffer_store_dwordx4 v[{PF+6}:{PF+9}], v3, s[20:23], s70 offen")
    a("s_waitcnt vmcnt(0)")
    a.label("L_k0_nf")
    a("v_mul_u32_u24 v6, 144, v1"); a("s_lshl_b32 s3, s51, 5"); a(f"s_add_u32 s3, s3, {L0_WJ}"); a("v_add_u32 v6, s3, v6")
    a(f"s_waitcnt vmcnt({(0 if NOWD else 16)+npf})")
    stamp(a, 1, "k0")
    for r in range(8): a(f"v_lshl_or_b32 v{WP+r}, v{WV+2*r+1}, 16, v{WV+2*r}")
    a(f"ds_write_b128 v6, v[{WP}:{WP+3}]"); a(f"ds_write_b128 v6, v[{WP+4}:{WP+7}] offset:16")
    a(f"v_lshl_or_b32 v{XC+3}, v{XC+4}, 16, v{XC+3}")
    a(f"v_lshlrev_b32 v{XC}, 2, v{XC}"); a("s_lshl_b32 s69, s62, 5"); a("s_add_u32 s69, s69, 0x200000")
    a(f"buffer_store_dword v{XC+3}, v{XC}, s[40:43], s69 offen")
    if not NOWD:
        a(f"s_waitcnt vmcnt({1+npf})")
        stamp(a, 2, "k0")
        for half in (0, 1):
            dv = DV + 8*half
            for q in range(4): a(f"v_lshl_or_b32 v{DP+4*half+q}, v{dv+2*q+1}, 16, v{dv+2*q}")
        for half, sf in ((0, 67), (1, 68)):
            a(f"s_lshl_b32 s3, s{sf}, 10")
            a(f"buffer_store_dwordx4 v[{DP+4*half}:{DP+3+4*half}], v3, s[24:27], s3 offen")
    else: stamp(a, 2, "k0")
    if WDT:
        a(f"s_waitcnt vmcnt({npf-2})")
        for ci in range(2):
            a(f"ds_read_b64_tr_b16 v[{86+4*ci}:{87+4*ci}], v85 offset:{ci*256}")
            a(f"ds_read_b64_tr_b16 v[{88+4*ci}:{89+4*ci}], v85 offset:{ci*256+1024}")
        a("s_lshl_b32 s69, s67, 11")
        a("s_waitcnt lgkmcnt(0)")
        a("buffer_store_dwordx4 v[86:89], v3, s[24:27], s69 offen")
        a("buffer_store_dwordx4 v[90:93], v3, s[24:27], s69 offen offset:1024")
    a("v_lshrrev_b32 v5, 3, v1"); a("v_and_b32 v6, 7, v1"); a("s_lshl_b32 s3, s51, 4"); a("v_add_u32 v5, s3, v5")
    a("v_mul_u32_u24 v7, 144, v5"); a("v_lshlrev_b32 v8, 4, v6"); a("v_add_u32 v7, v7, v8")
    a(f"v_add_u32 v7, {L0_WJ}, v7")
    a("v_lshlrev_b32 v5, 13, v5"); a("v_add_u32 v5, v5, v8")
    a("s_and_b32 s62, s2, 3"); a("s_lshl_b32 s62, s62, 19")
    a("s_lshr_b32 s63, s2, 2"); a("s_lshl_b32 s63, s63, 7"); a("s_add_u32 s62, s62, s63")
    a("s_add_u32 s63, s62, 0x10000")
    a("v_lshrrev_b32 v9, 3, v1"); a("s_lshl_b32 s3, s51, 3"); a("v_add_u32 v9, s3, v9")
    a("v_mul_u32_u24 v10, 1040, v6"); a("v_lshl_add_u32 v10, v9, 4, v10"); a(f"v_add_u32 v10, {L0_XN}, v10")
    a("v_lshrrev_b32 v11, 1, v9"); a("v_lshlrev_b32 v11, 10, v11"); a("v_and_b32 v9, 1, v9"); a("v_lshl_add_u32 v11, v9, 9, v11")
    a("v_add_u32 v11, v11, v8")
    a("s_lshr_b32 s66, s49, 2"); a("s_lshl_b32 s66, s66, 15"); a("s_and_b32 s3, s49, 3"); a("s_lshl_b32 s3, s3, 7"); a("s_add_u32 s66, s66, s3")
    a("s_add_u32 s67, s66, 0x4000")
    stamp(a, 3, "k0")
    a("s_waitcnt lgkmcnt(0)")
    a("s_barrier")
    stamp(a, 4, "k0")
    a("ds_read_b128 v[12:15], v10"); a("ds_read_b128 v[16:19], v10 offset:512")
    a("ds_read_b128 v[20:23], v7"); a(f"ds_read_b128 v[24:27], v7 offset:{8*144}")
    a("s_waitcnt lgkmcnt(2)")
    a("buffer_store_dwordx4 v[12:15], v11, s[28:31], s66 offen")
    a("buffer_store_dwordx4 v[16:19], v11, s[28:31], s67 offen")
    a("s_waitcnt lgkmcnt(0)")
    a("buffer_store_dwordx4 v[20:23], v5, s[40:43], s62 offen")
    a("buffer_store_dwordx4 v[24:27], v5, s[40:43], s63 offen")
    stamp(a, 5, "k0")
    stamp_flush(a, 6, "k0", 5)
    a("s_endpgm")

def k0_aux2(a):
    a("v_lshlrev_b32 v6, 1, v1")
    a("s_and_b32 s62, s2, 0xfc"); a("s_add_u32 s62, s62, s51")
    a("s_lshr_b32 s63, s62, 5")
    a("s_lshr_b32 s3, s62, 2"); a("s_and_b32 s3, s3, 7"); a("s_lshl_b32 s3, s3, 3"); a("s_add_u32 s63, s63, s3")
    a("s_and_b32 s3, s62, 3"); a("s_lshl_b32 s3, s3, 7"); a("s_add_u32 s63, s63, s3")
    a("s_mul_i32 s63, s63, 514")
    a("s_and_b32 s66, s2, 3"); a("s_lshl_b32 s66, s66, 7"); a("s_add_u32 s66, s66, s63")
    a(f"v_and_b32 v{XC}, 7, v1"); a(f"v_lshrrev_b32 v{XC+1}, 2, v{XC}"); a(f"v_and_b32 v{XC+2}, 3, v{XC}")
    a(f"v_mul_u32_u24 v{XC+1}, 32896, v{XC+1}"); a(f"v_mul_u32_u24 v{XC+2}, 263168, v{XC+2}"); a(f"v_add_u32 v{XC+1}, v{XC+1}, v{XC+2}")
    a("s_lshl_b32 s67, s2, 2"); a("s_add_u32 s67, s67, s51")
    a("s_waitcnt lgkmcnt(0)")
    srd_from_ptr(a, 32, 6, 2048*514)
    srd_from_ptr(a, 36, 8, 2048*514)
    a("s_cmp_lt_u32 s67, 32"); a("s_cbranch_scc0 L_k0_nf")
    srd_from_ptr(a, 20, 16, SZ_FLAG, WS_FLAG)
    for q in range(4): a(f"v_mov_b32 v{PF+6+q}, 0")
    a(f"s_mul_i32 s3, s67, {FSTR}")
    a("s_mov_b64 exec, 255")
    for fl in (FL_H, FL_S, FL_P):
        a(f"s_add_u32 s70, s3, {fl}")
        a(f"buffer_store_dwordx4 v[{PF+6}:{PF+9}], v3, s[20:23], s70 offen")
    a("s_mov_b64 exec, -1")
    a(f"s_lshl_b32 s70, s67, 10"); a(f"s_add_u32 s70, s70, {FL_Y}")
    a(f"buffer_store_dwordx4 v[{PF+6}:{PF+9}], v3, s[20:23], s70 offen")
    a.label("L_k0_nf")
    for r in range(8):
        koff = (64*(r >> 2) + 512*(r & 3))*514
        a(f"s_add_u32 s3, s66, {koff}")
        a(f"buffer_load_ushort v{WV+2*r}, v6, s[32:35], s3 offen")
        a(f"buffer_load_ushort v{WV+2*r+1}, v6, s[36:39], s3 offen")
    a(f"buffer_load_ushort v{XC+3}, v{XC+1}, s[32:35], s63 offen offset:512")
    a(f"buffer_load_ushort v{XC+4}, v{XC+1}, s[36:39], s63 offen offset:512")
    srd_from_ptr(a, 44, 14, 1376*1024)
    nl = 0
    if WDT:
        a("v_lshrrev_b32 v80, 5, v1"); a("v_bfe_u32 v81, v1, 4, 1"); a("v_bfe_u32 v82, v1, 2, 2"); a("v_and_b32 v83, 3, v1")
        a("v_lshlrev_b32 v84, 12, v80"); a("v_lshl_add_u32 v84, v82, 10, v84"); a("v_lshl_add_u32 v84, v81, 6, v84"); a("v_lshl_add_u32 v84, v83, 4, v84")
        a("v_lshlrev_b32 v85, 9, v80"); a("v_lshl_add_u32 v85, v82, 6, v85"); a("v_lshl_add_u32 v85, v81, 5, v85"); a("v_lshl_add_u32 v85, v83, 3, v85")
        a("s_lshl_b32 s68, s51, 11"); a(f"s_add_u32 s68, s68, {L0_WD}"); a("v_add_u32 v85, s68, v85")
        a("s_lshr_b32 s69, s67, 3"); a("s_lshl_b32 s69, s69, 14"); a("s_and_b32 s3, s67, 7"); a("s_lshl_b32 s3, s3, 7"); a("s_add_u32 s69, s69, s3")
        a("s_mov_b32 m0, s68")
        a("buffer_load_dwordx4 v84, s[44:47], s69 offen lds")
        a("s_add_u32 m0, s68, 1024"); a("s_add_u32 s69, s69, 0x2000")
        a("buffer_load_dwordx4 v84, s[44:47], s69 offen lds")
        nl = 2
    def prefetch():
        n = 0
        a("s_cmp_lt_u32 s67, 512"); a("s_cselect_b32 s72, s10, s12"); a("s_cselect_b32 s73, s11, s13")
        a("s_and_b32 s73, s73, 0xffff"); a(f"s_mov_b32 s74, {512*2752}"); a("s_mov_b32 s75, 0x00020000")
        a("v_min_u32 v4, 42, v1"); a("v_lshlrev_b32 v4, 6, v4")
        a("s_and_b32 s70, s67, 511"); a("s_mul_i32 s70, s70, 2752")
        a(f"buffer_load_dword v{PF}, v4, s[72:75], s70 offen"); n += 1
        a("s_getpc_b64 s[76:77]")
        a.raw("L_k0_pc2:")
        a("s_add_u32 s76, s76, k1_kernel-L_k0_pc2")
        a("s_addc_u32 s77, s77, 0")
        a("s_and_b32 s77, s77, 0xffff")
        a(f"s_mov_b32 s78, TWTAB+{TAB_SIZE}-k1_kernel")
        a("s_mov_b32 s79, 0x00020000")
        a("v_and_b32 v5, 15, v1"); a("v_lshlrev_b32 v5, 6, v5")
        a("s_lshr_b32 s70, s2, 3"); a("s_and_b32 s70, s70, 31"); a("s_lshl_b32 s70, s70, 2"); a("s_add_u32 s70, s70, s51"); a("s_lshl_b32 s70, s70, 10")
        a(f"buffer_load_dword v{PF+4}, v5, s[76:79], s70 offen"); n += 1
        if not WDT:
            a("v_min_u32 v5, 10, v1"); a("v_lshlrev_b32 v5, 7, v5"); a(f"s_mul_i32 s70, s67, {11*128}")
            a(f"buffer_load_dword v{PF+5}, v5, s[44:47], s70 offen"); n += 1
        return n
    PFL = os.environ.get("PFL", "1") == "1"
    npf = 0
    if not PFL: npf = prefetch()
    srd_from_ptr(a, 40, 16, SZ_WT, WS_WT)
    srd_from_ptr(a, 24, 16, SZ_WD, WS_WD)
    a("v_mul_u32_u24 v6, 144, v1"); a("s_lshl_b32 s3, s51, 5"); a(f"s_add_u32 s3, s3, {L0_WJ}"); a("v_add_u32 v6, s3, v6")
    a("v_lshrrev_b32 v70, 3, v1"); a("v_and_b32 v71, 7, v1"); a("s_lshl_b32 s3, s51, 4"); a("v_add_u32 v70, s3, v70")
    a("v_mul_u32_u24 v72, 144, v70"); a("v_lshlrev_b32 v73, 4, v71"); a("v_add_u32 v72, v72, v73")
    a(f"v_add_u32 v72, {L0_WJ}, v72")
    a("v_lshlrev_b32 v70, 13, v70"); a("v_add_u32 v70, v70, v73")
    a("s_and_b32 s60, s2, 3"); a("s_lshl_b32 s60, s60, 19")
    a("s_lshr_b32 s61, s2, 2"); a("s_lshl_b32 s61, s61, 7"); a("s_add_u32 s60, s60, s61")
    a("s_add_u32 s61, s60, 0x10000")
    a(f"v_lshlrev_b32 v{XC}, 2, v{XC}"); a("s_lshl_b32 s59, s62, 5"); a("s_add_u32 s59, s59, 0x200000")
    a(f"s_waitcnt vmcnt({nl+npf})")
    stamp(a, 1, "k0")
    for r in range(8): a(f"v_lshl_or_b32 v{WP+r}, v{WV+2*r+1}, 16, v{WV+2*r}")
    a(f"ds_write_b128 v6, v[{WP}:{WP+3}]"); a(f"ds_write_b128 v6, v[{WP+4}:{WP+7}] offset:16")
    a(f"v_lshl_or_b32 v{XC+3}, v{XC+4}, 16, v{XC+3}")
    if WDT:
        a(f"s_waitcnt vmcnt({npf})")
        for ci in range(2):
            a(f"ds_read_b64_tr_b16 v[{86+4*ci}:{87+4*ci}], v85 offset:{ci*256}")
            a(f"ds_read_b64_tr_b16 v[{88+4*ci}:{89+4*ci}], v85 offset:{ci*256+1024}")
    if PFL: prefetch()
    a(f"buffer_store_dword v{XC+3}, v{XC}, s[40:43], s59 offen")
    stamp(a, 2, "k0")
    if WDT:
        a("s_lshl_b32 s69, s67, 11")
        a("s_waitcnt lgkmcnt(0)")
        a("buffer_store_dwordx4 v[86:89], v3, s[24:27], s69 offen")
        a("buffer_store_dwordx4 v[90:93], v3, s[24:27], s69 offen offset:1024")
    stamp(a, 3, "k0")
    a("s_waitcnt lgkmcnt(0)")
    a("s_barrier")
    stamp(a, 4, "k0")
    a("ds_read_b128 v[20:23], v72"); a(f"ds_read_b128 v[24:27], v72 offset:{8*144}")
    a("s_waitcnt lgkmcnt(1)")
    a("buffer_store_dwordx4 v[20:23], v70, s[40:43], s60 offen")
    a("s_waitcnt lgkmcnt(0)")
    a("buffer_store_dwordx4 v[24:27], v70, s[40:43], s61 offen")
    stamp(a, 5, "k0")
    stamp_flush(a, 6, "k0", 5)
    a("s_endpgm")

def k0_kernel(a):
    stamp(a, 0, "k0")
    a("s_load_dwordx4 s[4:7], s[0:1], 0")
    a("s_load_dwordx2 s[8:9], s[0:1], 16")
    a("s_load_dwordx2 s[10:11], s[0:1], 32"); a("s_load_dwordx2 s[12:13], s[0:1], 40")
    a("s_load_dwordx2 s[14:15], s[0:1], 48")
    a("s_load_dwordx2 s[16:17], s[0:1], 72")
    srd_table(a, 24, "L_k0_pc")
    a(f"s_mov_b32 s64, {fhex(R2)}"); a(f"s_mov_b32 s65, {fhex(R2)}")
    a("v_and_b32 v1, 63, v0")
    a("v_lshrrev_b32 v2, 6, v0")
    a("v_readfirstlane_b32 s50, v2")
    a("v_lshlrev_b32 v3, 4, v1")
    if K0V2:
        K0M = os.environ.get("K0M", "0")
        a("s_mov_b32 s98, s2")
        if K0M == "0":
            a("s_bfe_u32 s48, s2, 0x10003"); a("s_and_b32 s3, s2, 7"); a("s_lshr_b32 s2, s2, 4"); a("s_lshl_b32 s2, s2, 3"); a("s_or_b32 s2, s2, s3")
        elif K0M == "3":
            a("s_lshr_b32 s48, s2, 5"); a("s_xor_b32 s48, s48, s2"); a("s_bfe_u32 s48, s48, 0x10003")
            a("s_and_b32 s3, s2, 7"); a("s_lshr_b32 s2, s2, 4"); a("s_lshl_b32 s2, s2, 3"); a("s_or_b32 s2, s2, s3")
        elif K0M == "1":
            a("s_lshr_b32 s48, s2, 8"); a("s_and_b32 s2, s2, 255")
        else:
            a("s_lshr_b32 s48, s2, 8"); a("s_xor_b32 s48, s48, 1"); a("s_and_b32 s2, s2, 255")
        rowgroup_map(a, 49, 2)
        a("s_mov_b32 s51, s50")
        a("s_cmp_lg_u32 s48, 0"); a("s_cbranch_scc1 L_k0_aux")
        k0_fft(a)
        a.label("L_k0_aux")
        k0_aux2(a)
        return
    rowgroup_map(a, 49, 2)
    a("s_and_b32 s51, s50, 3")
    a("s_cmp_ge_u32 s50, 4"); a("s_cbranch_scc1 L_k0_aux")
    k0_fft(a)
    a.label("L_k0_aux")
    k0_aux(a)
```

```python
import sys, os, re, importlib
os.environ.setdefault("NOWD", "1")
os.environ.setdefault("FPRIO", "3")
os.environ.setdefault("LATEWD", "1")
os.environ.setdefault("PY", "sc1")
from gen_n0 import *
import gen_m1
G = importlib.import_module("gen_" + os.environ.get("GM", "m2"))
from gen_k23 import k2_col_role, K2_COL_LDS

HDR = open("cdna_kernels/" + KN + ".s.ref").read().split("; Override launch geometry")[0]

def kstart(a, name):
    a.raw(f".globl {name}\n.p2align 8\n.type {name},@function")
    a.label(name)

def build():
    a = Asm()
    k0, k1 = "k0_kernel", "k1_kernel"
    lds1 = max(K2_COL_LDS, G.M_LDS)
    g0, b0 = (512, 256) if K0V2 else (256, 512)
    a.raw(HDR + f"; @launch kernel={k0} grid=({g0},1,1) block=({b0},1,1) lds={K0_LDS}\n"
              + f"; @launch kernel={k1} grid=(512,1,1) block=(256,1,1) lds={lds1}\n"
              + '.amdgcn_target "amdgcn-amd-amdhsa--gfx950"\n.text')
    kstart(a, k0)
    a(f"s_cmp_ge_u32 s2, {g0}"); a("s_cbranch_scc1 L_k0_exit")
    k0_kernel(a)
    a.label("L_k0_exit")
    a("s_endpgm")
    kstart(a, k1)
    a("s_cmp_ge_u32 s2, 512"); a("s_cbranch_scc1 L_k1_exit")
    a("s_cmp_ge_u32 s2, 256"); a("s_cbranch_scc1 L_k1_col")
    gp = os.environ.get("GPRIO", "0")
    if gp != "0": a(f"s_setprio {gp}")
    G.g_role(a)
    a.label("L_k1_col")
    fp = os.environ.get("FPRIO", "0")
    if fp != "0": a(f"s_setprio {fp}")
    a("s_sub_u32 s2, s2, 256")
    NPK[0] = os.environ.get('NPK', '1') == '1'
    k2_col_role(a, getattr(G, "f_cont", gen_m1.f_cont))
    NPK[0] = False
    a.label("L_k1_exit")
    a("s_endpgm")
    txt = a.render()
    i1 = txt.index("k1_kernel:")
    k0p = os.environ.get("K0P", "sc0 sc1")
    txt = re.sub(r"(buffer_store_dword\S* .*offen.*)", r"\1 " + k0p, txt[:i1]) + re.sub(r"(buffer_store_dword\S* .*offen.*)", r"\1 sc0 sc1", txt[i1:])
    txt += twiddle_table()
    txt += '.section .rodata,"a"\n'
    for nm, vg in ((k0, K0_VGPR), (k1, G.M_VGPR)):
        txt += ".p2align 6\n" + kernel_desc(nm, vg)
    return txt

if __name__ == "__main__":
    out = sys.argv[1] if len(sys.argv) > 1 else "cdna_kernels/" + KN + ".s"
    open(out, "w").write(build())
```

```python
from gen_common import *
R2 = 1.0/math.sqrt(2.0)

WS_S = WS_G; SZ_S = SZ_G
WS_XN = 0x1700000; SZ_XN = 2048*1024
WS_FLAG = 0x1900000; SZ_FLAG = 0x100000
FSTR = 4352; FL_Y = 0; FL_H = 0x40000 + 1024; FL_S = 0x80000 + 2048; FL_P = 0xC0000 + 3072

FREG = 4928
L0_FFT = 0
L0_WJ = 4*FREG
L0_XN = L0_WJ + 64*144
L0_WD = L0_XN + 8*1040
WDT = os.environ.get('WDT', '0') == '1'
K0_LDS = L0_WD + (8192 if WDT else 0)
K0V2 = os.environ.get('K0V2', '0') == '1'
K0_VGPR = 104 if K0V2 else 96

def rowgroup_map(a, dst, src):
    a(f"s_and_b32 s{dst}, s{src}, 3"); a(f"s_lshl_b32 s{dst}, s{dst}, 6")
    a(f"s_and_b32 s3, s{src}, 4"); a("s_lshl_b32 s3, s3, 3"); a(f"s_or_b32 s{dst}, s{dst}, s3")
    a(f"s_lshr_b32 s3, s{src}, 3"); a("s_and_b32 s3, s3, 31"); a(f"s_or_b32 s{dst}, s{dst}, s3")

def wave_sum4(a, regs, sdst):
    for sh in (1, 2, 4, 8):
        for r in regs: a(f"v_add_f32_dpp v{r}, v{r}, v{r} row_shr:{sh} row_mask:0xf bank_mask:0xf bound_ctrl:0")
    for r in regs: a(f"v_add_f32_dpp v{r}, v{r}, v{r} row_bcast:15 row_mask:0xa bank_mask:0xf")
    for r in regs: a(f"v_add_f32_dpp v{r}, v{r}, v{r} row_bcast:31 row_mask:0xc bank_mask:0xf")
    for i, r in enumerate(regs): a(f"v_readlane_b32 s{sdst+i}, v{r}, 63")

def ln_two_rows_xn(a, A, T, sT, vxn):
    t0, t1, M, Rv, t2, t3 = T, T+2, T+4, T+6, T+8, T+10
    cadd(a, t0, A[0], A[1]); a(f"v_pk_mul_f32 {P(t1)}, {P(A[0])}, {P(A[0])}")
    cadd(a, t2, A[2], A[3]); a(f"v_pk_mul_f32 {P(t3)}, {P(A[1])}, {P(A[1])}")
    cadd(a, t0, t0, A[4]); a(f"v_pk_fma_f32 {P(t1)}, {P(A[2])}, {P(A[2])}, {P(t1)}")
    cadd(a, t2, t2, A[5]); a(f"v_pk_fma_f32 {P(t3)}, {P(A[3])}, {P(A[3])}, {P(t3)}")
    cadd(a, t0, t0, A[6]); a(f"v_pk_fma_f32 {P(t1)}, {P(A[4])}, {P(A[4])}, {P(t1)}")
    cadd(a, t2, t2, A[7]); a(f"v_pk_fma_f32 {P(t3)}, {P(A[5])}, {P(A[5])}, {P(t3)}")
    a(f"v_pk_fma_f32 {P(t1)}, {P(A[6])}, {P(A[6])}, {P(t1)}")
    a(f"v_pk_fma_f32 {P(t3)}, {P(A[7])}, {P(A[7])}, {P(t3)}")
    cadd(a, t0, t0, t2); cadd(a, t1, t1, t3)
    wave_sum4(a, [t0, t0+1, t1, t1+1], sT)
    a(f"v_mov_b32 v{M}, s{sT}"); a(f"v_mov_b32 v{M+1}, s{sT+1}")
    a(f"v_mov_b32 v{Rv}, s{sT+2}"); a(f"v_mov_b32 v{Rv+1}, s{sT+3}")
    a(f"v_mul_f32 v{M}, {fhex(1/512)}, v{M}"); a(f"v_mul_f32 v{M+1}, {fhex(1/512)}, v{M+1}")
    a(f"v_mul_f32 v{Rv}, {fhex(1/512)}, v{Rv}"); a(f"v_mul_f32 v{Rv+1}, {fhex(1/512)}, v{Rv+1}")
    a(f"v_fma_f32 v{Rv}, -v{M}, v{M}, v{Rv}"); a(f"v_fma_f32 v{Rv+1}, -v{M+1}, v{M+1}, v{Rv+1}")
    a(f"v_max_f32 v{Rv}, 0, v{Rv}"); a(f"v_max_f32 v{Rv+1}, 0, v{Rv+1}")
    def rnd(p, t):
        a(f"v_cvt_pk_bf16_f32 v{t}, v{p}, v{p+1}")
        a(f"v_lshlrev_b32 v{p}, 16, v{t}")
        a(f"v_and_b32 v{p+1}, 0xffff0000, v{t}")
    rnd(M, t0)
    rnd(Rv, t1)
    a(f"v_add_f32 v{Rv}, {fhex(1e-5)}, v{Rv}"); a(f"v_add_f32 v{Rv+1}, {fhex(1e-5)}, v{Rv+1}")
    for j in range(0, 4): csub(a, A[j], A[j], M)
    rnd(Rv, t1)
    a(f"v_sqrt_f32 v{Rv}, v{Rv}"); a(f"v_sqrt_f32 v{Rv+1}, v{Rv+1}")
    for j in range(4, 8): csub(a, A[j], A[j], M)
    rnd(Rv, t1)
    a(f"v_rcp_f32 v{Rv}, v{Rv}"); a(f"v_rcp_f32 v{Rv+1}, v{Rv+1}")
    tt = [t0, t0+1, t2, t2+1, t3, t3+1, M, M+1]
    for j in range(8): a(f"v_cvt_pk_bf16_f32 v{tt[j]}, v{A[j]}, v{A[j]+1}")
    for j in range(8):
        a(f"v_lshlrev_b32 v{A[j]}, 16, v{tt[j]}"); a(f"v_and_b32 v{A[j]+1}, 0xffff0000, v{tt[j]}")
    for j in range(8): a(f"v_pk_mul_f32 {P(A[j])}, {P(A[j])}, {P(Rv)}")
    for j in range(8): a(f"v_cvt_pk_bf16_f32 v{tt[j]}, v{A[j]}, v{A[j]+1}")
    for j in range(8):
        a(f"v_lshlrev_b32 v{A[j]}, 16, v{tt[j]}"); a(f"v_and_b32 v{A[j]+1}, 0xffff0000, v{tt[j]}")
        a(f"ds_write_b16 v{vxn}, v{tt[j]} offset:{128*j}")
        a(f"ds_write_b16_d16_hi v{vxn}, v{tt[j]} offset:{128*j+1040}")

def k0_fft(a):
    A = [8+2*i for i in range(8)]; B = [24+2*i for i in range(8)]
    TW1 = [40+2*i for i in range(8)]; TW2 = [56+2*i for i in range(8)]
    T = 72
    a("s_lshl_b32 s62, s49, 3"); a("s_lshl_b32 s3, s50, 1"); a("s_add_u32 s62, s62, s3")
    a("s_lshl_b32 s62, s62, 10")
    a("v_lshlrev_b32 v5, 1, v1")
    a("v_and_b32 v4, 7, v1"); a("v_lshlrev_b32 v4, 4, v4")
    a("s_waitcnt lgkmcnt(0)")
    srd_from_ptr(a, 20, 4, 2048*1024)
    for j in range(8):
        a(f"buffer_load_ushort v{A[j]}, v5, s[20:23], s62 offen offset:{128*j}")
        a(f"buffer_load_ushort v{A[j]+1}, v5, s[20:23], s62 offen offset:{128*j+1024}")
    load_tw(a, 40, 3, 24, T_R1, 64)
    load_tw(a, 56, 4, 24, T_R2, 8)
    srd_from_ptr(a, 28, 16, SZ_Y1T, WS_Y1T)
    a(f"s_mul_i32 s61, s50, {FREG}"); a(f"s_add_u32 s61, s61, {L0_FFT}")
    a(f"s_mul_i32 s3, s50, 2080"); a(f"s_add_u32 s3, s3, {L0_XN}"); a("v_add_u32 v89, s3, v5")
    a("v_lshlrev_b32 v84, 3, v1"); a("v_add_u32 v84, s61, v84")
    a("v_lshrrev_b32 v5, 3, v1"); a("v_and_b32 v6, 7, v1")
    a("v_mul_u32_u24 v85, 72, v5"); a("v_add_u32 v86, v85, v6"); a("v_lshlrev_b32 v86, 3, v86"); a("v_add_u32 v86, s61, v86")
    a("v_mul_u32_u24 v87, 9, v6"); a("v_add_u32 v87, v87, v85"); a("v_lshlrev_b32 v87, 3, v87"); a("v_add_u32 v87, s61, v87")
    a("v_lshlrev_b32 v88, 3, v6"); a("v_add_u32 v88, v88, v5"); a("v_lshlrev_b32 v88, 3, v88"); a("v_add_u32 v88, s61, v88")
    if K0V2:
        srd_from_ptr(a, 32, 16, SZ_XN, WS_XN)
        a("v_lshrrev_b32 v90, 3, v0")
        a("v_mul_u32_u24 v91, 1040, v6"); a("v_lshl_add_u32 v91, v90, 4, v91"); a(f"v_add_u32 v91, {L0_XN}, v91")
        a("v_lshrrev_b32 v92, 1, v90"); a("v_lshlrev_b32 v92, 10, v92"); a("v_and_b32 v90, 1, v90"); a("v_lshl_add_u32 v92, v90, 9, v92")
        a("v_lshl_add_u32 v92, v6, 4, v92")
        a("s_lshr_b32 s70, s49, 2"); a("s_lshl_b32 s70, s70, 15"); a("s_and_b32 s3, s49, 3"); a("s_lshl_b32 s3, s3, 7"); a("s_add_u32 s70, s70, s3")
        a("s_add_u32 s71, s70, 0x4000")
    a("s_waitcnt vmcnt(8)")
    stamp(a, 1, "k0")
    for j in range(8):
        a(f"v_lshlrev_b32 v{A[j]}, 16, v{A[j]}"); a(f"v_lshlrev_b32 v{A[j]+1}, 16, v{A[j]+1}")
    ln_two_rows_xn(a, A, T, 66, 89)
    stamp(a, 2, "k0")
    XNL = os.environ.get("XNL", "0") == "1"
    if K0V2 and not XNL:
        a("s_waitcnt lgkmcnt(0)"); a("s_barrier")
        a("ds_read_b128 v[96:99], v91"); a("ds_read_b128 v[100:103], v91 offset:512")
    bfly8(a, A, B, 64)
    if K0V2 and XNL: a("s_waitcnt vmcnt(0)")
    elif K0V2:
        a("s_waitcnt vmcnt(0) lgkmcnt(0)")
        a("buffer_store_dwordx4 v[96:99], v92, s[32:35], s70 offen")
        a("buffer_store_dwordx4 v[100:103], v92, s[32:35], s71 offen")
    else: a("s_waitcnt vmcnt(4)")
    for k in range(1, 8): cmul(a, A[k], B[k], TW1[k])
    a(f"ds_write_b64 v84, {P(B[0])}")
    for k in range(1, 8): a(f"ds_write_b64 v84, {P(A[k])} offset:{576*k}")
    for n1 in range(8): a(f"ds_read_b64 {P(A[n1])}, v86 offset:{64*n1}")
    a("s_waitcnt lgkmcnt(0)" if K0V2 else "s_waitcnt vmcnt(0) lgkmcnt(0)")
    bfly8(a, A, B, 64)
    for k in range(1, 8): cmul(a, A[k], B[k], TW2[k])
    a(f"ds_write_b64 v86, {P(B[0])}")
    for k in range(1, 8): a(f"ds_write_b64 v86, {P(A[k])} offset:{72*k}")
    for n0 in range(8): a(f"ds_read_b64 {P(A[n0])}, v87 offset:{8*n0}")
    a("s_waitcnt lgkmcnt(0)")
    bfly8(a, A, B, 64)
    for k2 in range(8): a(f"ds_write_b64 v88, {P(B[k2])} offset:{512*k2}")
    a(f"ds_write_b64 v88, {P(B[4])} offset:4096")
    Z = [8+2*i for i in range(4)]; ZM = [16+2*i for i in range(4)]
    a("v_lshrrev_b32 v5, 2, v0"); a("v_and_b32 v6, 3, v0")
    a(f"v_mul_u32_u24 v7, {FREG}, v6"); a(f"v_add_u32 v7, {L0_FFT}, v7")
    a("v_lshlrev_b32 v84, 3, v5"); a("v_add_u32 v84, v84, v7")
    a("v_sub_u32 v85, 320, v5"); a("v_lshlrev_b32 v85, 3, v85"); a("v_add_u32 v85, v85, v7")
    stamp(a, 3, "k0")
    a("s_waitcnt lgkmcnt(0)")
    a("s_barrier")
    stamp(a, 4, "k0")
    if K0V2 and XNL:
        a("ds_read_b128 v[96:99], v91"); a("ds_read_b128 v[100:103], v91 offset:512")
    for j in range(4):
        a(f"ds_read_b64 {P(Z[j])}, v84 offset:{512*j}")
        a(f"ds_read_b64 {P(ZM[j])}, v85 offset:{512*(3-j)}")
    a("v_cmp_eq_u32 vcc, 0, v5")
    a("v_lshlrev_b32 v5, 4, v0"); a(f"s_mul_i32 s3, s49, {RS}")
    if K0V2 and XNL:
        a("s_waitcnt lgkmcnt(8)")
        a("buffer_store_dwordx4 v[96:99], v92, s[32:35], s70 offen")
        a("buffer_store_dwordx4 v[100:103], v92, s[32:35], s71 offen")
    a("s_waitcnt lgkmcnt(0)")
    O = [24+4*j for j in range(4)]
    for j in range(4):
        a(f"v_pk_add_f32 {P(O[j])}, {P(Z[j])}, {P(ZM[j])} neg_hi:[0,1]")
        a(f"v_pk_add_f32 {P(O[j]+2)}, {P(Z[j])}, {P(ZM[j])} op_sel:[1,1] op_sel_hi:[0,0] neg_hi:[1,0]")
    a(f"v_add_f32 v{T}, v{Z[0]}, v{Z[0]}"); a(f"v_add_f32 v{T+1}, v{ZM[0]}, v{ZM[0]}")
    a(f"v_add_f32 v{T+2}, v{Z[0]+1}, v{Z[0]+1}"); a(f"v_add_f32 v{T+3}, v{ZM[0]+1}, v{ZM[0]+1}")
    for q in range(4): a(f"v_cndmask_b32 v{O[0]+q}, v{O[0]+q}, v{T+q}, vcc")
    for j in (1, 2, 3, 0):
        a(f"s_add_u32 s62, s3, {4096*j}")
        a(f"buffer_store_dwordx4 v[{O[j]}:{O[j]+3}], v5, s[28:31], s62 offen")
    stamp(a, 5, "k0")
    stamp_flush(a, 6, "k0", 5)
    K0D = int(os.environ.get("K0D", "0"))
    if K0D:
        a("s_cmp_lg_u32 s2, 0"); a("s_cbranch_scc1 L_k0_dd")
        a.label("L_k0_dl")
        a("s_memrealtime s[92:93]"); a("s_waitcnt lgkmcnt(0)")
        a("s_sub_u32 s92, s92, s94"); a(f"s_cmp_lt_u32 s92, {K0D//10}"); a("s_cbranch_scc1 L_k0_dl")
        a.label("L_k0_dd")
    a("s_endpgm")

WV = 8; XC = 24; DV = 30; WP = 46; DP = 54; PF = 62
def k0_aux(a):
    a("v_lshlrev_b32 v6, 1, v1")
    a("s_and_b32 s62, s2, 0xfc"); a("s_add_u32 s62, s62, s51")
    a("s_lshr_b32 s63, s62, 5")
    a("s_lshr_b32 s3, s62, 2"); a("s_and_b32 s3, s3, 7"); a("s_lshl_b32 s3, s3, 3"); a("s_add_u32 s63, s63, s3")
    a("s_and_b32 s3, s62, 3"); a("s_lshl_b32 s3, s3, 7"); a("s_add_u32 s63, s63, s3")
    a("s_mul_i32 s63, s63, 514")
    a("s_and_b32 s66, s2, 3"); a("s_lshl_b32 s66, s66, 7"); a("s_add_u32 s66, s66, s63")
    a(f"v_and_b32 v{XC}, 7, v1"); a(f"v_lshrrev_b32 v{XC+1}, 2, v{XC}"); a(f"v_and_b32 v{XC+2}, 3, v{XC}")
    a(f"v_mul_u32_u24 v{XC+1}, 32896, v{XC+1}"); a(f"v_mul_u32_u24 v{XC+2}, 263168, v{XC+2}"); a(f"v_add_u32 v{XC+1}, v{XC+1}, v{XC+2}")
    a("s_lshl_b32 s67, s2, 2"); a("s_add_u32 s67, s67, s51")
    a("v_and_b32 v7, 31, v1"); a("v_lshlrev_b32 v7, 1, v7")
    a("v_lshrrev_b32 v2, 5, v1"); a("v_lshlrev_b32 v2, 12, v2"); a("v_add_u32 v7, v7, v2")
    a("v_add_u32 v2, 0x2000, v7")
    a("v_and_b32 v4, 31, v1"); a("v_min_u32 v4, 23, v4"); a("v_lshlrev_b32 v4, 6, v4")
    a("v_lshrrev_b32 v5, 5, v1"); a("v_mul_u32_u24 v5, 2752, v5"); a("v_add_u32 v4, v4, v5")
    a("s_lshr_b32 s70, s2, 3"); a("s_and_b32 s70, s70, 31"); a("s_lshl_b32 s70, s70, 2"); a("s_add_u32 s70, s70, s51")
    a(f"s_mul_i32 s70, s70, {4*2752}")
    a("s_and_b32 s3, s2, 4")
    if os.environ.get("PFX") == "1": a("s_xor_b32 s3, s3, 4")
    a("s_mul_i32 s3, s3, 384"); a("s_add_u32 s70, s70, s3")
    a(f"s_add_u32 s71, s70, {2*2752}")
    a("s_waitcnt lgkmcnt(0)")
    srd_from_ptr(a, 32, 6, 2048*514)
    srd_from_ptr(a, 36, 8, 2048*514)
    for r in range(8):
        koff = (64*(r >> 2) + 512*(r & 3))*514
        a(f"s_add_u32 s3, s66, {koff}")
        a(f"buffer_load_ushort v{WV+2*r}, v6, s[32:35], s3 offen")
        a(f"buffer_load_ushort v{WV+2*r+1}, v6, s[36:39], s3 offen")
    a(f"buffer_load_ushort v{XC+3}, v{XC+1}, s[32:35], s63 offen offset:512")
    a(f"buffer_load_ushort v{XC+4}, v{XC+1}, s[36:39], s63 offen offset:512")
    srd_from_ptr(a, 44, 14, 1376*1024)
    if WDT:
        a("v_lshrrev_b32 v80, 5, v1"); a("v_bfe_u32 v81, v1, 4, 1"); a("v_bfe_u32 v82, v1, 2, 2"); a("v_and_b32 v83, 3, v1")
        a("v_lshlrev_b32 v84, 12, v80"); a("v_lshl_add_u32 v84, v82, 10, v84"); a("v_lshl_add_u32 v84, v81, 6, v84"); a("v_lshl_add_u32 v84, v83, 4, v84")
        a("v_lshlrev_b32 v85, 9, v80"); a("v_lshl_add_u32 v85, v82, 6, v85"); a("v_lshl_add_u32 v85, v81, 5, v85"); a("v_lshl_add_u32 v85, v83, 3, v85")
        a("s_lshl_b32 s68, s51, 11"); a(f"s_add_u32 s68, s68, {L0_WD}"); a("v_add_u32 v85, s68, v85")
        a("s_lshr_b32 s69, s67, 3"); a("s_lshl_b32 s69, s69, 14"); a("s_and_b32 s3, s67, 7"); a("s_lshl_b32 s3, s3, 7"); a("s_add_u32 s69, s69, s3")
        a("s_mov_b32 m0, s68")
        a("buffer_load_dwordx4 v84, s[44:47], s69 offen lds")
        a("s_add_u32 m0, s68, 1024"); a("s_add_u32 s69, s69, 0x2000")
        a("buffer_load_dwordx4 v84, s[44:47], s69 offen lds")
    def wd_loads(sf, dv):
        a(f"s_lshr_b32 s69, s{sf}, 4"); a("s_lshl_b32 s69, s69, 14")
        a(f"s_and_b32 s3, s{sf}, 15"); a("s_lshl_b32 s3, s3, 6"); a("s_add_u32 s69, s69, s3")
        for e in range(8):
            a(f"buffer_load_ushort v{dv+e}, v{7 if e < 4 else 2}, s[44:47], s69 offen offset:{1024*(e&3)}")
    NOWD = os.environ.get("NOWD", "0") == "1"
    if not NOWD:
        wd_loads(67, DV)
        a("s_add_u32 s68, s67, 1024")
        wd_loads(68, DV+8)
    npf = 2 if WDT else 0
    if os.environ.get("PFW", "1") == "2":
        a("s_cmp_lt_u32 s67, 512"); a("s_cselect_b32 s72, s10, s12"); a("s_cselect_b32 s73, s11, s13")
        a("s_and_b32 s73, s73, 0xffff"); a(f"s_mov_b32 s74, {512*2752}"); a("s_mov_b32 s75, 0x00020000")
        a("v_min_u32 v4, 42, v1"); a("v_lshlrev_b32 v4, 6, v4")
        a("s_and_b32 s70, s67, 511"); a("s_mul_i32 s70, s70, 2752")
        a(f"buffer_load_dword v{PF}, v4, s[72:75], s70 offen")
        npf += 1
    if os.environ.get("PFW", "1") == "1":
        srd_from_ptr(a, 72, 10, 512*2752)
        srd_from_ptr(a, 76, 12, 512*2752)
        a(f"buffer_load_dword v{PF}, v4, s[72:75], s70 offen")
        a(f"buffer_load_dword v{PF+1}, v4, s[76:79], s70 offen")
        a(f"buffer_load_dword v{PF+2}, v4, s[72:75], s71 offen")
        a(f"buffer_load_dword v{PF+3}, v4, s[76:79], s71 offen")
        npf += 4
    if os.environ.get("PFC", "1") == "1":
        a("s_getpc_b64 s[72:73]")
        a.raw("L_k0_pc2:")
        a("s_add_u32 s72, s72, k1_kernel-L_k0_pc2")
        a("s_addc_u32 s73, s73, 0")
        a("s_and_b32 s73, s73, 0xffff")
        a(f"s_mov_b32 s74, TWTAB+{TAB_SIZE}-k1_kernel")
        a("s_mov_b32 s75, 0x00020000")
        a("v_and_b32 v5, 15, v1"); a("v_lshlrev_b32 v5, 6, v5")
        a("s_lshr_b32 s70, s2, 3"); a("s_and_b32 s70, s70, 31"); a("s_lshl_b32 s70, s70, 2"); a("s_add_u32 s70, s70, s51"); a("s_lshl_b32 s70, s70, 10")
        a(f"buffer_load_dword v{PF+4}, v5, s[72:75], s70 offen")
        npf += 1
    if NOWD and os.environ.get("PFD", "1") == "1" and not WDT:
        a("v_min_u32 v5, 10, v1"); a("v_lshlrev_b32 v5, 7, v5"); a(f"s_mul_i32 s70, s67, {11*128}")
        a(f"buffer_load_dword v{PF+5}, v5, s[44:47], s70 offen")
        npf += 1
    srd_from_ptr(a, 40, 16, SZ_WT, WS_WT)
    srd_from_ptr(a, 24, 16, SZ_WD, WS_WD)
    srd_from_ptr(a, 28, 16, SZ_XN, WS_XN)
    a("s_lshl_b32 s3, s51, 8"); a("s_add_u32 s3, s3, s2"); a("s_cmp_lt_u32 s3, 32"); a("s_cbranch_scc0 L_k0_nf")
    srd_from_ptr(a, 20, 16, SZ_FLAG, WS_FLAG)
    for q in range(4): a(f"v_mov_b32 v{PF+6+q}, 0")
    a(f"s_mul_i32 s3, s2, {FSTR}")
    a("s_mov_b64 exec, 0xffff")
    for fl in (FL_H, FL_S, FL_P):
        a(f"s_add_u32 s70, s3, {fl}")
        a(f"buffer_store_dwordx4 v[{PF+6}:{PF+9}], v3, s[20:23], s70 offen")
    a("s_mov_b64 exec, -1")
    a(f"s_lshl_b32 s70, s2, 10"); a(f"s_add_u32 s70, s70, {FL_Y}")
    a(f"buffer_store_dwordx4 v[{PF+6}:{PF+9}], v3, s[20:23], s70 offen")
    a("s_waitcnt vmcnt(0)")
    a.label("L_k0_nf")
    a("v_mul_u32_u24 v6, 144, v1"); a("s_lshl_b32 s3, s51, 5"); a(f"s_add_u32 s3, s3, {L0_WJ}"); a("v_add_u32 v6, s3, v6")
    a(f"s_waitcnt vmcnt({(0 if NOWD else 16)+npf})")
    stamp(a, 1, "k0")
    for r in range(8): a(f"v_lshl_or_b32 v{WP+r}, v{WV+2*r+1}, 16, v{WV+2*r}")
    a(f"ds_write_b128 v6, v[{WP}:{WP+3}]"); a(f"ds_write_b128 v6, v[{WP+4}:{WP+7}] offset:16")
    a(f"v_lshl_or_b32 v{XC+3}, v{XC+4}, 16, v{XC+3}")
    a(f"v_lshlrev_b32 v{XC}, 2, v{XC}"); a("s_lshl_b32 s69, s62, 5"); a("s_add_u32 s69, s69, 0x200000")
    a(f"buffer_store_dword v{XC+3}, v{XC}, s[40:43], s69 offen")
    if not NOWD:
        a(f"s_waitcnt vmcnt({1+npf})")
        stamp(a, 2, "k0")
        for half in (0, 1):
            dv = DV + 8*half
            for q in range(4): a(f"v_lshl_or_b32 v{DP+4*half+q}, v{dv+2*q+1}, 16, v{dv+2*q}")
        for half, sf in ((0, 67), (1, 68)):
            a(f"s_lshl_b32 s3, s{sf}, 10")
            a(f"buffer_store_dwordx4 v[{DP+4*half}:{DP+3+4*half}], v3, s[24:27], s3 offen")
    else: stamp(a, 2, "k0")
    if WDT:
        a(f"s_waitcnt vmcnt({npf-2})")
        for ci in range(2):
            a(f"ds_read_b64_tr_b16 v[{86+4*ci}:{87+4*ci}], v85 offset:{ci*256}")
            a(f"ds_read_b64_tr_b16 v[{88+4*ci}:{89+4*ci}], v85 offset:{ci*256+1024}")
        a("s_lshl_b32 s69, s67, 11")
        a("s_waitcnt lgkmcnt(0)")
        a("buffer_store_dwordx4 v[86:89], v3, s[24:27], s69 offen")
        a("buffer_store_dwordx4 v[90:93], v3, s[24:27], s69 offen offset:1024")
    a("v_lshrrev_b32 v5, 3, v1"); a("v_and_b32 v6, 7, v1"); a("s_lshl_b32 s3, s51, 4"); a("v_add_u32 v5, s3, v5")
    a("v_mul_u32_u24 v7, 144, v5"); a("v_lshlrev_b32 v8, 4, v6"); a("v_add_u32 v7, v7, v8")
    a(f"v_add_u32 v7, {L0_WJ}, v7")
    a("v_lshlrev_b32 v5, 13, v5"); a("v_add_u32 v5, v5, v8")
    a("s_and_b32 s62, s2, 3"); a("s_lshl_b32 s62, s62, 19")
    a("s_lshr_b32 s63, s2, 2"); a("s_lshl_b32 s63, s63, 7"); a("s_add_u32 s62, s62, s63")
    a("s_add_u32 s63, s62, 0x10000")
    a("v_lshrrev_b32 v9, 3, v1"); a("s_lshl_b32 s3, s51, 3"); a("v_add_u32 v9, s3, v9")
    a("v_mul_u32_u24 v10, 1040, v6"); a("v_lshl_add_u32 v10, v9, 4, v10"); a(f"v_add_u32 v10, {L0_XN}, v10")
    a("v_lshrrev_b32 v11, 1, v9"); a("v_lshlrev_b32 v11, 10, v11"); a("v_and_b32 v9, 1, v9"); a("v_lshl_add_u32 v11, v9, 9, v11")
    a("v_add_u32 v11, v11, v8")
    a("s_lshr_b32 s66, s49, 2"); a("s_lshl_b32 s66, s66, 15"); a("s_and_b32 s3, s49, 3"); a("s_lshl_b32 s3, s3, 7"); a("s_add_u32 s66, s66, s3")
    a("s_add_u32 s67, s66, 0x4000")
    stamp(a, 3, "k0")
    a("s_waitcnt lgkmcnt(0)")
    a("s_barrier")
    stamp(a, 4, "k0")
    a("ds_read_b128 v[12:15], v10"); a("ds_read_b128 v[16:19], v10 offset:512")
    a("ds_read_b128 v[20:23], v7"); a(f"ds_read_b128 v[24:27], v7 offset:{8*144}")
    a("s_waitcnt lgkmcnt(2)")
    a("buffer_store_dwordx4 v[12:15], v11, s[28:31], s66 offen")
    a("buffer_store_dwordx4 v[16:19], v11, s[28:31], s67 offen")
    a("s_waitcnt lgkmcnt(0)")
    a("buffer_store_dwordx4 v[20:23], v5, s[40:43], s62 offen")
    a("buffer_store_dwordx4 v[24:27], v5, s[40:43], s63 offen")
    stamp(a, 5, "k0")
    stamp_flush(a, 6, "k0", 5)
    a("s_endpgm")

def k0_aux2(a):
    a("v_lshlrev_b32 v6, 1, v1")
    a("s_and_b32 s62, s2, 0xfc"); a("s_add_u32 s62, s62, s51")
    a("s_lshr_b32 s63, s62, 5")
    a("s_lshr_b32 s3, s62, 2"); a("s_and_b32 s3, s3, 7"); a("s_lshl_b32 s3, s3, 3"); a("s_add_u32 s63, s63, s3")
    a("s_and_b32 s3, s62, 3"); a("s_lshl_b32 s3, s3, 7"); a("s_add_u32 s63, s63, s3")
    a("s_mul_i32 s63, s63, 514")
    a("s_and_b32 s66, s2, 3"); a("s_lshl_b32 s66, s66, 7"); a("s_add_u32 s66, s66, s63")
    a(f"v_and_b32 v{XC}, 7, v1"); a(f"v_lshrrev_b32 v{XC+1}, 2, v{XC}"); a(f"v_and_b32 v{XC+2}, 3, v{XC}")
    a(f"v_mul_u32_u24 v{XC+1}, 32896, v{XC+1}"); a(f"v_mul_u32_u24 v{XC+2}, 263168, v{XC+2}"); a(f"v_add_u32 v{XC+1}, v{XC+1}, v{XC+2}")
    a("s_lshl_b32 s67, s2, 2"); a("s_add_u32 s67, s67, s51")
    a("s_waitcnt lgkmcnt(0)")
    srd_from_ptr(a, 32, 6, 2048*514)
    srd_from_ptr(a, 36, 8, 2048*514)
    a("s_cmp_lt_u32 s67, 32"); a("s_cbranch_scc0 L_k0_nf")
    srd_from_ptr(a, 20, 16, SZ_FLAG, WS_FLAG)
    for q in range(4): a(f"v_mov_b32 v{PF+6+q}, 0")
    a(f"s_mul_i32 s3, s67, {FSTR}")
    a("s_mov_b64 exec, 0xffff")
    for fl in (FL_H, FL_S, FL_P):
        a(f"s_add_u32 s70, s3, {fl}")
        a(f"buffer_store_dwordx4 v[{PF+6}:{PF+9}], v3, s[20:23], s70 offen")
    a("s_mov_b64 exec, -1")
    a(f"s_lshl_b32 s70, s67, 10"); a(f"s_add_u32 s70, s70, {FL_Y}")
    a(f"buffer_store_dwordx4 v[{PF+6}:{PF+9}], v3, s[20:23], s70 offen")
    a.label("L_k0_nf")
    for r in range(8):
        koff = (64*(r >> 2) + 512*(r & 3))*514
        a(f"s_add_u32 s3, s66, {koff}")
        a(f"buffer_load_ushort v{WV+2*r}, v6, s[32:35], s3 offen")
        a(f"buffer_load_ushort v{WV+2*r+1}, v6, s[36:39], s3 offen")
    a(f"buffer_load_ushort v{XC+3}, v{XC+1}, s[32:35], s63 offen offset:512")
    a(f"buffer_load_ushort v{XC+4}, v{XC+1}, s[36:39], s63 offen offset:512")
    srd_from_ptr(a, 44, 14, 1376*1024)
    nl = 0
    if WDT:
        a("v_lshrrev_b32 v80, 5, v1"); a("v_bfe_u32 v81, v1, 4, 1"); a("v_bfe_u32 v82, v1, 2, 2"); a("v_and_b32 v83, 3, v1")
        a("v_lshlrev_b32 v84, 12, v80"); a("v_lshl_add_u32 v84, v82, 10, v84"); a("v_lshl_add_u32 v84, v81, 6, v84"); a("v_lshl_add_u32 v84, v83, 4, v84")
        a("v_lshlrev_b32 v85, 9, v80"); a("v_lshl_add_u32 v85, v82, 6, v85"); a("v_lshl_add_u32 v85, v81, 5, v85"); a("v_lshl_add_u32 v85, v83, 3, v85")
        a("s_lshl_b32 s68, s51, 11"); a(f"s_add_u32 s68, s68, {L0_WD}"); a("v_add_u32 v85, s68, v85")
        a("s_lshr_b32 s69, s67, 3"); a("s_lshl_b32 s69, s69, 14"); a("s_and_b32 s3, s67, 7"); a("s_lshl_b32 s3, s3, 7"); a("s_add_u32 s69, s69, s3")
        a("s_mov_b32 m0, s68")
        a("buffer_load_dwordx4 v84, s[44:47], s69 offen lds")
        a("s_add_u32 m0, s68, 1024"); a("s_add_u32 s69, s69, 0x2000")
        a("buffer_load_dwordx4 v84, s[44:47], s69 offen lds")
        nl = 2
    def prefetch():
        n = 0
        a("s_cmp_lt_u32 s67, 512"); a("s_cselect_b32 s72, s10, s12"); a("s_cselect_b32 s73, s11, s13")
        a("s_and_b32 s73, s73, 0xffff"); a(f"s_mov_b32 s74, {512*2752}"); a("s_mov_b32 s75, 0x00020000")
        a("v_min_u32 v4, 42, v1"); a("v_lshlrev_b32 v4, 6, v4")
        a("s_and_b32 s70, s67, 511"); a("s_mul_i32 s70, s70, 2752")
        a(f"buffer_load_dword v{PF}, v4, s[72:75], s70 offen"); n += 1
        a("s_getpc_b64 s[76:77]")
        a.raw("L_k0_pc2:")
        a("s_add_u32 s76, s76, k1_kernel-L_k0_pc2")
        a("s_addc_u32 s77, s77, 0")
        a("s_and_b32 s77, s77, 0xffff")
        a(f"s_mov_b32 s78, TWTAB+{TAB_SIZE}-k1_kernel")
        a("s_mov_b32 s79, 0x00020000")
        a("v_and_b32 v5, 15, v1"); a("v_lshlrev_b32 v5, 6, v5")
        a("s_lshr_b32 s70, s2, 3"); a("s_and_b32 s70, s70, 31"); a("s_lshl_b32 s70, s70, 2"); a("s_add_u32 s70, s70, s51"); a("s_lshl_b32 s70, s70, 10")
        a(f"buffer_load_dword v{PF+4}, v5, s[76:79], s70 offen"); n += 1
        if not WDT:
            a("v_min_u32 v5, 10, v1"); a("v_lshlrev_b32 v5, 7, v5"); a(f"s_mul_i32 s70, s67, {11*128}")
            a(f"buffer_load_dword v{PF+5}, v5, s[44:47], s70 offen"); n += 1
        return n
    PFL = os.environ.get("PFL", "1") == "1"
    npf = 0
    if not PFL: npf = prefetch()
    srd_from_ptr(a, 40, 16, SZ_WT, WS_WT)
    srd_from_ptr(a, 24, 16, SZ_WD, WS_WD)
    a("v_mul_u32_u24 v6, 144, v1"); a("s_lshl_b32 s3, s51, 5"); a(f"s_add_u32 s3, s3, {L0_WJ}"); a("v_add_u32 v6, s3, v6")
    a("v_lshrrev_b32 v70, 3, v1"); a("v_and_b32 v71, 7, v1"); a("s_lshl_b32 s3, s51, 4"); a("v_add_u32 v70, s3, v70")
    a("v_mul_u32_u24 v72, 144, v70"); a("v_lshlrev_b32 v73, 4, v71"); a("v_add_u32 v72, v72, v73")
    a(f"v_add_u32 v72, {L0_WJ}, v72")
    a("v_lshlrev_b32 v70, 13, v70"); a("v_add_u32 v70, v70, v73")
    a("s_and_b32 s60, s2, 3"); a("s_lshl_b32 s60, s60, 19")
    a("s_lshr_b32 s61, s2, 2"); a("s_lshl_b32 s61, s61, 7"); a("s_add_u32 s60, s60, s61")
    a("s_add_u32 s61, s60, 0x10000")
    a(f"v_lshlrev_b32 v{XC}, 2, v{XC}"); a("s_lshl_b32 s59, s62, 5"); a("s_add_u32 s59, s59, 0x200000")
    a(f"s_waitcnt vmcnt({nl+npf})")
    stamp(a, 1, "k0")
    for r in range(8): a(f"v_lshl_or_b32 v{WP+r}, v{WV+2*r+1}, 16, v{WV+2*r}")
    a(f"ds_write_b128 v6, v[{WP}:{WP+3}]"); a(f"ds_write_b128 v6, v[{WP+4}:{WP+7}] offset:16")
    a(f"v_lshl_or_b32 v{XC+3}, v{XC+4}, 16, v{XC+3}")
    if WDT:
        a(f"s_waitcnt vmcnt({npf})")
        for ci in range(2):
            a(f"ds_read_b64_tr_b16 v[{86+4*ci}:{87+4*ci}], v85 offset:{ci*256}")
            a(f"ds_read_b64_tr_b16 v[{88+4*ci}:{89+4*ci}], v85 offset:{ci*256+1024}")
    if PFL: prefetch()
    a(f"buffer_store_dword v{XC+3}, v{XC}, s[40:43], s59 offen")
    stamp(a, 2, "k0")
    if WDT:
        a("s_lshl_b32 s69, s67, 11")
        a("s_waitcnt lgkmcnt(0)")
        a("buffer_store_dwordx4 v[86:89], v3, s[24:27], s69 offen")
        a("buffer_store_dwordx4 v[90:93], v3, s[24:27], s69 offen offset:1024")
    stamp(a, 3, "k0")
    a("s_waitcnt lgkmcnt(0)")
    a("s_barrier")
    stamp(a, 4, "k0")
    a("ds_read_b128 v[20:23], v72"); a(f"ds_read_b128 v[24:27], v72 offset:{8*144}")
    a("s_waitcnt lgkmcnt(1)")
    a("buffer_store_dwordx4 v[20:23], v70, s[40:43], s60 offen")
    a("s_waitcnt lgkmcnt(0)")
    a("buffer_store_dwordx4 v[24:27], v70, s[40:43], s61 offen")
    stamp(a, 5, "k0")
    stamp_flush(a, 6, "k0", 5)
    a("s_endpgm")

def k0_kernel(a):
    stamp(a, 0, "k0")
    if os.environ.get("K0D"): a("s_memrealtime s[94:95]")
    a("s_load_dwordx4 s[4:7], s[0:1], 0")
    a("s_load_dwordx2 s[8:9], s[0:1], 16")
    a("s_load_dwordx2 s[10:11], s[0:1], 32"); a("s_load_dwordx2 s[12:13], s[0:1], 40")
    a("s_load_dwordx2 s[14:15], s[0:1], 48")
    a("s_load_dwordx2 s[16:17], s[0:1], 72")
    srd_table(a, 24, "L_k0_pc")
    a(f"s_mov_b32 s64, {fhex(R2)}"); a(f"s_mov_b32 s65, {fhex(R2)}")
    a("v_and_b32 v1, 63, v0")
    a("v_lshrrev_b32 v2, 6, v0")
    a("v_readfirstlane_b32 s50, v2")
    a("v_lshlrev_b32 v3, 4, v1")
    if K0V2:
        K0M = os.environ.get("K0M", "0")
        a("s_mov_b32 s98, s2")
        if K0M == "0":
            a("s_bfe_u32 s48, s2, 0x10003"); a("s_and_b32 s3, s2, 7"); a("s_lshr_b32 s2, s2, 4"); a("s_lshl_b32 s2, s2, 3"); a("s_or_b32 s2, s2, s3")
        elif K0M == "3":
            a("s_lshr_b32 s48, s2, 5"); a("s_xor_b32 s48, s48, s2"); a("s_bfe_u32 s48, s48, 0x10003")
            a("s_and_b32 s3, s2, 7"); a("s_lshr_b32 s2, s2, 4"); a("s_lshl_b32 s2, s2, 3"); a("s_or_b32 s2, s2, s3")
        elif K0M == "1":
            a("s_lshr_b32 s48, s2, 8"); a("s_and_b32 s2, s2, 255")
        else:
            a("s_lshr_b32 s48, s2, 8"); a("s_xor_b32 s48, s48, 1"); a("s_and_b32 s2, s2, 255")
        rowgroup_map(a, 49, 2)
        a("s_mov_b32 s51, s50")
        a("s_cmp_lg_u32 s48, 0"); a("s_cbranch_scc1 L_k0_aux")
        k0_fft(a)
        a.label("L_k0_aux")
        k0_aux2(a)
        return
    rowgroup_map(a, 49, 2)
    a("s_and_b32 s51, s50, 3")
    a("s_cmp_ge_u32 s50, 4"); a("s_cbranch_scc1 L_k0_aux")
    k0_fft(a)
    a.label("L_k0_aux")
    k0_aux(a)
```

```python
import sys, os, re, importlib
os.environ.setdefault("FPRIO", "3")
from gen_n0 import *
G = importlib.import_module("gen_" + os.environ.get("GM", "u1"))

HDR = open("cdna_kernels/" + KN + ".s.ref").read().split("; Override launch geometry")[0]

def kstart(a, name):
    a.raw(f".globl {name}\n.p2align 8\n.type {name},@function")
    a.label(name)

def build():
    a = Asm()
    k0, k1 = "k0_kernel", "k1_kernel"
    lds1 = G.M_LDS
    a.raw(HDR + f"; @launch kernel={k0} grid=(32,1,1) block=(64,1,1) lds=0\n"
              + f"; @launch kernel={k1} grid=(512,1,1) block=(256,1,1) lds={lds1}\n"
              + '.amdgcn_target "amdgcn-amd-amdhsa--gfx950"\n.text')
    kstart(a, k0)
    a(f"s_cmp_ge_u32 s2, 32"); a("s_cbranch_scc1 L_k0_exit")
    G.kz_kernel(a)
    a.label("L_k0_exit")
    a("s_endpgm")
    kstart(a, k1)
    a("s_cmp_ge_u32 s2, 512"); a("s_cbranch_scc1 L_k1_exit")
    FF = os.environ.get("FFIRST", "1") == "1"
    a("s_cmp_ge_u32 s2, 256")
    a("s_and_b32 s2, s2, 255") if False else None
    a("s_cbranch_scc1 L_k1_second")
    def grole():
        gp = os.environ.get("GPRIO", "0")
        if gp != "0": a(f"s_setprio {gp}")
        G.g_role(a)
    def frole():
        fp = os.environ.get("FPRIO", "0")
        if fp != "0": a(f"s_setprio {fp}")
        G.f_role(a)
    (frole if FF else grole)()
    a.label("L_k1_second")
    a("s_sub_u32 s2, s2, 256")
    (grole if FF else frole)()
    a.label("L_k1_exit")
    a("s_endpgm")
    txt = a.render()
    txt = re.sub(r"(buffer_store_dword\S* .*offen.*)", r"\1 sc0 sc1", txt)
    txt += twiddle_table()
    txt += '.section .rodata,"a"\n'
    for nm, vg in ((k0, 16), (k1, G.M_VGPR)):
        txt += ".p2align 6\n" + kernel_desc(nm, vg)
    return txt

if __name__ == "__main__":
    out = sys.argv[1]
    open(out, "w").write(build())
```
